```python
import torch

def _softmax(x, axis=-1):
    return torch.softmax(x, dim=axis)
def _gelu(x):
    return torch.nn.functional.gelu(x, approximate="tanh")
def _silu(x):
    return torch.nn.functional.silu(x)
def _sigmoid(x):
    return torch.sigmoid(x)
def _layernorm(x, axis=-1, eps=1e-5):
    m = x.mean(dim=axis, keepdim=True)
    v = x.var(dim=axis, keepdim=True, unbiased=False)
    return (x - m) / torch.sqrt(v + eps)
def _scatter_add(tgt, idx, src, axis=0):
    return tgt.clone().index_add_(axis, idx, src)
def _segment_sum(src, seg, n):
    out = torch.zeros((n,) + src.shape[1:], dtype=src.dtype)
    return out.index_add_(0, seg, src)
def _pad(x, pw):
    flat = tuple(v for pair in reversed(pw) for v in pair)
    return torch.nn.functional.pad(x, flat)

kernel_name = 'interleave_layers__linear_kernel_hedgehog__ssm_conv_h3__prompt'

def setup_inputs():

    _w = (lambda a: (lambda t: t.to(torch.bfloat16) if t.is_floating_point() else t)(torch.as_tensor(a)))
    def _A_setup():
        B, S, D, H = 1, 2048, 576, 32
        Dh = D // H
        return {
            "x": _w((lambda *s: torch.randn(*s, dtype=torch.bfloat16) * 0.05)(B, S, D)),
            "wqkv": _w((lambda *s: torch.randn(*s, dtype=torch.bfloat16) * 0.4)(D, 3 * D)),
            "w_phi": _w((lambda *s: torch.randn(*s, dtype=torch.bfloat16) * 0.4)(H, Dh, Dh) * (Dh ** -0.5)),
            "wo": _w((lambda *s: torch.randn(*s, dtype=torch.bfloat16) * 0.05)(D, D)),
        }
    _A_in = _A_setup()

    def _B_setup():
        B, S, D = 1, 2048, 576
        ks = 4
        return {
            "q": _w((lambda *s: torch.randn(*s, dtype=torch.bfloat16) * 0.05)(B, S, D)),
            "k": _w((lambda *s: torch.randn(*s, dtype=torch.bfloat16) * 0.8)(B, S, D)),
            "v": _w((lambda *s: torch.randn(*s, dtype=torch.bfloat16) * 0.8)(B, S, D)),
            "shift_k": _w((lambda *s: torch.randn(*s, dtype=torch.bfloat16) * 0.8)(D, ks) * 0.5),
            "ssm_k": _w((lambda *s: torch.randn(*s, dtype=torch.bfloat16) * 1.6)(D, S) * (1.0 / S ** 0.5)),
            "ssm_D": _w((lambda *s: torch.randn(*s, dtype=torch.bfloat16) * 0.8)(D)),
        }
    _B_in = _B_setup()

    return {
        "A_x": _A_in["x"],
        "A_wqkv": _A_in["wqkv"],
        "A_w_phi": _A_in["w_phi"],
        "A_wo": _A_in["wo"],
        "B_q": _B_in["q"],
        "B_k": _B_in["k"],
        "B_v": _B_in["v"],
        "B_shift_k": _B_in["shift_k"],
        "B_ssm_k": _B_in["ssm_k"],
        "B_ssm_D": _B_in["ssm_D"],
    }

def reference(A_x, A_wqkv, A_w_phi, A_wo, B_q, B_k, B_v, B_shift_k, B_ssm_k, B_ssm_D):
    def _A_ref(x, wqkv, w_phi, wo):
        B, S, D = x.shape
        H = 32; Dh = D // H
        qkv = (lambda x, *d: x.permute(*d))((x @ wqkv).reshape(B, S, 3, H, Dh), 2, 0, 3, 1, 4)
        q, k, v = qkv[0], qkv[1], qkv[2]
        pq = torch.einsum("bhsd,hdf->bhsf", q, w_phi)
        pk = torch.einsum("bhsd,hdf->bhsf", k, w_phi)
        phi_q = torch.concatenate([_softmax(pq, axis=-1), _softmax(-pq, axis=-1)], axis=-1)
        phi_k = torch.concatenate([_softmax(pk, axis=-1), _softmax(-pk, axis=-1)], axis=-1)
        kv = torch.einsum("bhsf,bhsd->bhfd", phi_k, v)
        z  = torch.einsum("bhsf->bhf", phi_k)
        num = torch.einsum("bhqf,bhfd->bhqd", phi_q, kv)
        den = torch.einsum("bhqf,bhf->bhq", phi_q, z)[..., None] + 1e-6
        o = num / den
        return (lambda x, *d: x.permute(*d))(o, 0, 2, 1, 3).reshape(B, S, D) @ wo

    def _B_ref(q, k, v, shift_k, ssm_k, ssm_D):
        B, S, D = q.shape
        ks = shift_k.shape[-1]
        k_pad = _pad(k, ((0, 0), (ks - 1, 0), (0, 0)))
        k_shift = torch.zeros_like(k)
        for t in range(ks):
            k_shift = k_shift + k_pad[:, t:t + S, :] * shift_k[:, ks - 1 - t][None, None, :]
        kv = k_shift * v
        L = 2 * S
        kv_pad = _pad(kv, ((0, 0), (0, S), (0, 0)))
        kf_pad = _pad(ssm_k, ((0, 0), (0, S)))
        kv_f = (lambda x, axes=(-2,-1): torch.fft.rfft2(x.float(), dim=axes))(kv_pad[:, None, :, :], axes=(1, 2))
        kf_f = (lambda x, axes=(-2,-1): torch.fft.rfft2(x.float(), dim=axes))(kf_pad[:, None, :], axes=(1, 2))
        kf_f = (lambda x, *d: x.permute(*d))(kf_f, 1, 2, 0)
        y_f = kv_f * kf_f[None, :, :, :]
        y = (lambda x, s, axes=(-2,-1): torch.fft.irfft2(x, s=s, dim=axes).to(torch.bfloat16))(y_f, (1, L), axes=(1, 2))[:, 0, :S, :]
        y = y + kv * ssm_D[None, None, :]
        return q * y

    x = A_x
    x = x + _A_ref(_layernorm(x, axis=-1), A_wqkv, A_w_phi, A_wo)
    x = x + _B_ref(_layernorm(x, axis=-1), B_k, B_v, B_shift_k, B_ssm_k, B_ssm_D)
    x = x + _A_ref(_layernorm(x, axis=-1), A_wqkv, A_w_phi, A_wo)
    x = x + _B_ref(_layernorm(x, axis=-1), B_k, B_v, B_shift_k, B_ssm_k, B_ssm_D)
    return x
```

```python
import re

TRANS = ("v_exp_f32", "v_log_f32", "v_rcp_f32", "v_rsq_f32", "v_sqrt_f32", "v_sin_f32", "v_cos_f32", "v_rcp_iflag_f32")
REG_RE = re.compile(r"^(-|\|)?(?:abs\()?([vsa])(?:(\d+)|\[(\d+):(\d+)\])\)?\|?$")


def parse_reg(tok):
    t = tok.strip()
    if t.startswith("-"):
        t = t[1:]
    if t.startswith("abs(") and t.endswith(")"):
        t = t[4:-1]
    if t.startswith("|") and t.endswith("|"):
        t = t[1:-1]
    if t == "vcc":
        return {("s", 106), ("s", 107)}
    if t == "vcc_lo":
        return {("s", 106)}
    if t == "vcc_hi":
        return {("s", 107)}
    if t == "exec":
        return {("s", 126), ("s", 127)}
    if t == "exec_lo":
        return {("s", 126)}
    if t == "exec_hi":
        return {("s", 127)}
    if t == "m0":
        return {("s", 124)}
    m = re.match(r"^([vsa])(\d+)$", t)
    if m:
        return {(m.group(1), int(m.group(2)))}
    m = re.match(r"^([vsa])\[(\d+):(\d+)\]$", t)
    if m:
        return {(m.group(1), i) for i in range(int(m.group(2)), int(m.group(3)) + 1)}
    return set()


class Ins:
    __slots__ = ("text", "op", "ops", "mods", "cls", "wr", "rd", "passes", "srcA", "srcB", "srcC", "dpp", "lds_dma", "wide_store", "sdata")

    def __init__(self, text):
        self.text = text
        t = text.split(";")[0].strip()
        parts = t.split(None, 1)
        self.op = parts[0]
        rest = parts[1] if len(parts) > 1 else ""
        ops, cur, depth = [], "", 0
        for ch in rest:
            if ch in "[(":
                depth += 1
            if ch in "])":
                depth -= 1
            if ch == "," and depth == 0:
                ops.append(cur.strip())
                cur = ""
            else:
                cur += ch
        if cur.strip():
            ops.append(cur.strip())
        mods = ""
        if ops:
            last = ops[-1].split(None, 1)
            if len(last) > 1:
                ops[-1] = last[0]
                mods = last[1]
        self.ops, self.mods = ops, mods
        op = self.op
        self.wr, self.rd = set(), set()
        self.passes = 0
        self.srcA = self.srcB = self.srcC = set()
        self.dpp = ("_dpp" in op) or ("quad_perm" in mods) or ("row_" in mods) or ("wave_" in mods)
        self.lds_dma = False
        self.wide_store = False
        self.sdata = set()
        R = [parse_reg(o) for o in ops]
        if op.startswith("v_mfma"):
            self.cls = "mfma"
            self.passes = 8 if "32x32x16" in op else 4
            self.wr = R[0]
            self.srcA, self.srcB, self.srcC = R[1], R[2], R[3]
            self.rd = R[1] | R[2] | R[3]
        elif op.startswith("v_"):
            self.cls = "valu"
            if op.startswith("v_cmp"):
                self.wr = R[0]
                self.rd = set().union(*R[1:])
            elif op.startswith("v_permlane") and "swap" in op:
                self.wr = R[0] | R[1]
                self.rd = R[0] | R[1]
            elif op.startswith(("v_add_co", "v_sub_co", "v_addc_co", "v_subb_co", "v_subrev_co", "v_mad_u64_u32")):
                self.wr = R[0] | R[1]
                self.rd = set().union(*R[2:])
            elif op == "v_nop":
                pass
            else:
                self.wr = R[0]
                self.rd = set().union(*R[1:]) if len(R) > 1 else set()
                if op.startswith(("v_fmac", "v_dot2c", "v_pk_fmac", "v_writelane")) or self.dpp:
                    self.rd |= R[0]
                if op.startswith("v_cndmask") and len(ops) == 3:
                    self.rd |= parse_reg("vcc")
        elif op.startswith(("buffer_", "global_")):
            self.cls = "vmem"
            allr = set().union(*R) if R else set()
            if op in ("buffer_inv", "buffer_wbl2"):
                pass
            elif "lds" in mods.split() or op.startswith("global_load_lds"):
                self.lds_dma = True
                self.rd = allr | {("s", 124)}
            elif "_load" in op:
                self.wr = R[0]
                self.rd = set().union(*R[1:])
                if "d16" in op:
                    self.rd |= R[0]
            elif "_store" in op:
                self.rd = allr
                self.sdata = R[0] if op.startswith("buffer_") else R[1]
                self.wide_store = ("x3" in op) or ("x4" in op)
            elif "_atomic" in op:
                self.rd = allr
                if "sc0" in mods.split():
                    self.wr = R[0]
        elif op.startswith("ds_"):
            self.cls = "ds"
            if op.startswith(("ds_read", "ds_bpermute", "ds_permute", "ds_swizzle")):
                self.wr = R[0]
                self.rd = set().union(*R[1:])
            else:
                self.rd = set().union(*R)
        elif op.startswith(("s_load", "s_buffer_load", "s_memtime", "s_memrealtime", "s_atomic")):
            self.cls = "smem"
            self.wr = R[0]
            self.rd = set().union(*R[1:]) if len(R) > 1 else set()
        elif op.startswith("s_"):
            self.cls = "salu"
            if op.startswith(("s_cmp", "s_cbranch", "s_branch", "s_waitcnt", "s_nop", "s_barrier", "s_endpgm", "s_sleep", "s_setprio", "s_bitcmp")):
                self.rd = set().union(*R) if R else set()
            else:
                self.wr = R[0] if R else set()
                self.rd = set().union(*R[1:]) if len(R) > 1 else set()
                if "saveexec" in op:
                    self.wr |= parse_reg("exec")
        else:
            raise ValueError("unknown op " + text)

    def states(self):
        if self.op == "s_nop":
            return int(self.ops[0], 0) + 1
        return 1


def need_states(p, c):
    n = 0
    vw = {r for r in p.wr if r[0] in "va"}
    sw = {r for r in p.wr if r[0] == "s"}
    if p.cls == "valu":
        if c.cls == "mfma" and vw & c.rd:
            n = max(n, 2)
        if p.op.startswith(TRANS) and c.cls == "valu" and not c.op.startswith(TRANS) and vw & (c.rd | c.wr):
            n = max(n, 1)
        if p.op.startswith(TRANS) and c.cls in ("vmem", "ds") and vw & c.rd:
            n = max(n, 1)
        if c.cls == "valu" and c.op.startswith(("v_readlane", "v_readfirstlane")) and vw & c.rd:
            n = max(n, 1)
        if c.cls == "valu" and c.dpp and vw & c.rd:
            n = max(n, 2)
        if c.cls == "valu" and c.op.startswith("v_permlane") and vw & c.rd:
            n = max(n, 2)
        if sw:
            if c.cls == "valu" and sw & c.rd:
                n = max(n, 4 if c.op.startswith(("v_readlane", "v_writelane")) else 2)
            if c.cls == "vmem" and sw & c.rd:
                n = max(n, 5)
            if c.cls in ("salu", "smem") and sw & c.rd:
                n = max(n, 1)
        if ("sdwa" in p.op or "op_sel" in p.mods) and not p.op.startswith("v_pk") and c.cls == "valu" and vw & (c.rd | c.wr):
            n = max(n, 1)
    if p.cls == "mfma":
        big = 8 if p.passes == 4 else 12
        if c.cls == "mfma":
            if p.wr & (c.srcA | c.srcB):
                n = max(n, big)
            if p.wr & c.srcC:
                if not (p.wr == c.srcC and p.passes == c.passes):
                    n = max(n, 6 if p.passes == 4 else 10)
            elif p.wr & c.wr:
                n = max(n, big)
        elif c.cls in ("valu", "vmem", "ds"):
            if p.wr & (c.rd | c.wr):
                n = max(n, big)
            if c.cls == "valu" and p.srcC & c.wr:
                n = max(n, 3 if p.passes == 4 else 7)
    if p.cls == "salu" and ("s", 124) in p.wr and (c.lds_dma or c.op.startswith("s_movrel") or "addtid" in c.op):
        n = max(n, 1)
    if p.cls == "vmem" and p.wide_store and p.sdata & c.wr:
        n = max(n, 2 if c.cls in ("valu", "mfma") else 1)
    if p.cls == "ds" and p.op.startswith(("ds_write_b128", "ds_write_b96")) and False:
        pass
    return n


class Kernel:
    def __init__(self, name):
        self.name = name
        self.items = []
        self.maxv = 0
        self.maxs = 0
        self.maxa = -1

    def __call__(self, text):
        for line in text.split("\n"):
            line = line.strip()
            if line:
                self.items.append(line)

    def label(self, l):
        self.items.append(l + ":")

    def comment(self, c):
        self.items.append("; " + c)

    def finish(self, check=True):
        out = []
        hist = []
        vm, lg = [], []
        problems = []
        for it in self.items:
            if it.startswith(";"):
                out.append("    " + it)
                continue
            if it.endswith(":"):
                out.append(it)
                continue
            if it.startswith("."):
                out.append("    " + it)
                continue
            c = Ins(it)
            dist = 0
            need = 0
            for p in reversed(hist):
                n = need_states(p, c)
                if n > dist:
                    need = max(need, n - dist)
                dist += p.states()
                if dist >= 20:
                    break
            while need > 0:
                k = min(need, 16)
                nop = Ins("s_nop %d" % (k - 1))
                hist.append(nop)
                out.append("    s_nop %d" % (k - 1))
                need -= k
            if c.op == "s_waitcnt":
                full = it
                m = re.search(r"vmcnt\((\d+)\)", full)
                if m:
                    n = int(m.group(1))
                    vm = vm[len(vm) - n:] if n > 0 and n < len(vm) else ([] if n == 0 else vm)
                m = re.search(r"lgkmcnt\((\d+)\)", full)
                if m:
                    n = int(m.group(1))
                    if n == 0:
                        lg = []
                    elif n < len(lg):
                        if any(x.cls == "smem" for x in lg):
                            problems.append("counted lgkmcnt with smem outstanding: " + it)
                        lg = lg[len(lg) - n:]
            else:
                touched = c.rd | c.wr
                for q in vm + lg:
                    if q.wr & touched:
                        if q.wr & c.rd or not (q.cls == c.cls and c.cls in ("vmem", "ds") and False):
                            problems.append("pending load dest %s used by: %s   (load: %s)" % (sorted(q.wr & touched)[:3], it, q.text))
                if c.cls == "vmem":
                    vm.append(c)
                    if len(vm) > 63:
                        problems.append("vmcnt overflow (>63 outstanding) at " + it)
                elif c.cls == "ds":
                    lg.append(c)
                elif c.cls == "smem":
                    lg.append(c)
            for r in c.rd | c.wr:
                if r[0] == "v":
                    self.maxv = max(self.maxv, r[1] + 1)
                elif r[0] == "a":
                    self.maxa = max(self.maxa, r[1])
                elif r[0] == "s" and r[1] < 102:
                    self.maxs = max(self.maxs, r[1] + 1)
            hist.append(c)
            if len(hist) > 64:
                hist = hist[-40:]
            out.append("    " + it)
            if c.op in ("s_branch", "s_endpgm"):
                hist = []
                vm, lg = [], []
        if check and problems:
            for p in problems[:40]:
                print("PROBLEM[%s]: %s" % (self.name, p))
            raise SystemExit("waitcnt problems in " + self.name)
        return out

    def text(self, min_vgpr=0):
        body = self.finish()
        nv = max(self.maxv, min_vgpr, 8)
        acc = (nv + 3) // 4 * 4
        total = acc + (self.maxa + 1) if self.maxa >= 0 else nv
        if getattr(self, "align", True):
            body, nw, nn, nbytes = align_pass([self.name + ":"] + body)
            body = body[1:]
            print("  align pass: widened %d, nops %d, code bytes %d" % (nw, nn, nbytes))
        code = [".globl %s" % self.name, ".p2align 8", ".type %s,@function" % self.name, self.name + ":"] + body
        kd = [
            ".amdhsa_kernel %s" % self.name,
            "  .amdhsa_next_free_vgpr %d" % total,
            "  .amdhsa_next_free_sgpr %d" % max(self.maxs, 16),
            "  .amdhsa_accum_offset %d" % acc,
            "  .amdhsa_group_segment_fixed_size 0",
            "  .amdhsa_kernarg_size 104",
            "  .amdhsa_user_sgpr_count 2",
            "  .amdhsa_user_sgpr_kernarg_segment_ptr 1",
            "  .amdhsa_system_sgpr_workgroup_id_x 1",
            ".end_amdhsa_kernel",
        ]
        return "\n".join(code) + "\n", "\n".join(kd) + "\n", total


def vr(base, n=1):
    return "v%d" % base if n == 1 else "v[%d:%d]" % (base, base + n - 1)


def sr(base, n=1):
    return "s%d" % base if n == 1 else "s[%d:%d]" % (base, base + n - 1)


def ar(base, n=1):
    return "a%d" % base if n == 1 else "a[%d:%d]" % (base, base + n - 1)


import subprocess, tempfile, os

NO_WIDEN = ("v_readfirstlane", "v_permlane", "v_nop", "v_writelane", "v_readlane", "v_dot2c")


def _sizes(lines):
    src = '.amdgcn_target "amdgcn-amd-amdhsa--gfx950"\n.text\n' + "\n".join(lines) + "\n"
    d = tempfile.mkdtemp()
    open(d + "/a.s", "w").write(src)
    r = subprocess.run(["clang", "-x", "assembler", "-target", "amdgcn-amd-amdhsa", "-mcpu=gfx950", "-c", d + "/a.s", "-o", d + "/a.o"], capture_output=True, text=True)
    if r.returncode:
        print(r.stderr[:3000])
        raise SystemExit(1)
    out = subprocess.run(["llvm-objdump", "-d", "--mcpu=gfx950", d + "/a.o"], capture_output=True, text=True).stdout
    sz = []
    for l in out.split("\n"):
        if "//" in l and l.startswith("\t"):
            enc = l.split("//")[1].split(":")[1].split()
            sz.append(4 * len(enc))
    return sz


def align_pass(code_lines):
    idx = [i for i, l in enumerate(code_lines) if l.startswith("    ") and not l.strip().startswith((";", "."))]
    sz = _sizes(code_lines)
    assert len(sz) == len(idx), (len(sz), len(idx))
    lines = list(code_lines)
    off = 0
    nwid = nnop = 0
    n = len(idx)
    ins = {}
    for j in range(n):
        t = lines[idx[j]].strip()
        if sz[j] >= 8 and off % 8 == 4:
            b = j - 1
            done = False
            while b >= 0 and sz[b] == 4:
                tb = lines[idx[b]].strip()
                op = tb.split()[0]
                if op.startswith("v_") and not op.startswith(NO_WIDEN) and not op.endswith(("_e64", "_dpp", "_sdwa")):
                    lines[idx[b]] = "    " + op + "_e64" + tb[len(op):]
                    sz[b] = 8
                    off += 4
                    nwid += 1
                    done = True
                    break
                b -= 1
            if not done:
                run = 0
                while j + run < n and sz[j + run] >= 8 and not lines[idx[j + run]].strip().startswith("v_mfma"):
                    run += 1
                if run >= 6:
                    ins[idx[j]] = "    s_nop 0"
                    off += 4
                    nnop += 1
        off += sz[j]
    out = []
    for i, l in enumerate(lines):
        if i in ins:
            out.append(ins[i])
        out.append(l)
    return out, nwid, nnop, off
```

```python
import sys
from asmlib import Kernel, vr, sr, ar

NAME = "interleave_layers__linear_kernel_hedgehog__ssm_conv_h3__prompt"
NB_X = 2048 * 576 * 2
WS_WF, SZ_WF = 0x0, 16 * 129024
WS_WOF, SZ_WOF = 0x200000, 8 * 92160
WS_UT = 0x300000
WS_XF0 = 0x600000
WS_KVP1 = 0x900000
KVB = 3072
WS_OF1 = WS_KVP1 + 256 * KVB
WS_FILL_END = WS_OF1 + NB_X
WS_KVP2 = 0xD00000
WS_OF2 = WS_KVP2 + 256 * KVB
L_DELTA = WS_KVP2 - WS_KVP1
WS_XF2 = 0x1100000
WS_YT = 0x1400000
WS_ST1 = 0x1700000
WS_ST2 = WS_ST1 + 0x80000
WS_END = 0x1800000
WS_DIAG = 0x2000000
BIG = 0x7FFFFF00
LOG2E = 0x3FB8AA3B
SPIN_MAX = 20000
DIAG = False


def stamp(k, i):
    if DIAG:
        k("s_memrealtime s[98:99]")
        k(f"s_add_u32 m0, s96, {i}")
        k("s_waitcnt lgkmcnt(0)")
        k("v_writelane_b32 v255, s98, m0")


def stamp_init(k, kidx):
    if DIAG:
        srd(k, 92, 22, WS_DIAG, 0x400000)
        k("s_lshl_b32 s97, s2, 2")
        k("s_add_u32 s97, s97, s3")
        k(f"s_add_u32 s97, s97, {kidx*2048}")
        k("s_lshl_b32 s97, s97, 8")
        k("s_mov_b32 s96, 0")
        k("v_mov_b32 v255, 0")
        k("v_lshlrev_b32 v254, 2, v1")


def stamp_flush(k):
    if DIAG:
        k("buffer_store_dword v255, v254, s[92:95], s97 offen")


def srd(k, s, pbase, off, size):
    if off:
        k(f"s_add_u32 s{s}, s{pbase}, {off:#x}")
        k(f"s_addc_u32 s{s+1}, s{pbase+1}, 0")
    else:
        k(f"s_mov_b32 s{s}, s{pbase}")
        k(f"s_mov_b32 s{s+1}, s{pbase+1}")
    k(f"s_mov_b32 s{s+2}, {size:#x}")
    k(f"s_mov_b32 s{s+3}, 0x20000")


def unpack(k, dlo, dhi, src):
    k(f"v_lshlrev_b32 v{dlo}, 16, v{src}")
    k(f"v_and_b32 v{dhi}, 0xffff0000, v{src}")


def red_swap(k, op, a, b, dst):
    k(f"{op} v{a}, v{b}")
    k(f"v_add_f32 v{dst}, v{a}, v{b}")


def pl_rows(k, lo0, lo1, hi0, hi1, vi, t0, t1):
    k(f"v_lshrrev_b32 v{t0}, 3, v{vi}")
    k(f"v_mul_u32_u24 v{t0}, 18, v{t0}")
    k(f"v_bfe_u32 v{t1}, v{vi}, 2, 1")
    k(f"v_lshl_add_u32 v{t0}, v{t1}, 3, v{t0}")
    k(f"v_and_b32 v{t1}, 3, v{vi}")
    k(f"v_add_u32 v{lo0}, v{t0}, v{t1}")
    k(f"v_add_u32 v{lo1}, 4, v{lo0}")
    k(f"v_and_b32 v{t0}, 12, v{vi}")
    k(f"v_bfe_u32 v{t1}, v{vi}, 1, 1")
    k(f"v_add_u32 v{t0}, v{t0}, v{t1}")
    k(f"v_mul_u32_u24 v{t0}, 18, v{t0}")
    k(f"v_and_b32 v{t1}, 1, v{vi}")
    k(f"v_add_u32 v{t0}, v{t0}, v{t1}")
    k(f"v_add_u32 v{hi0}, 16, v{t0}")
    k(f"v_add_u32 v{hi1}, 36, v{hi0}")


def sel_frags(k, z0, vi, vq, t0, t1):
    for i in (0, 1, 4, 5):
        k(f"v_mov_b32 v{z0+i}, 0")
    k(f"v_and_b32 v{t0}, 1, v{vi}")
    k(f"v_lshlrev_b32 v{t0}, 4, v{t0}")
    k(f"v_mov_b32 v{t1}, 0x3f80")
    k(f"v_lshlrev_b32 v{t1}, v{t0}, v{t1}")
    k(f"v_lshrrev_b32 v{t0}, 2, v{vi}")
    k(f"v_cmp_eq_u32 vcc, v{t0}, v{vq}")
    k(f"v_cndmask_b32 v{t1}, 0, v{t1}, vcc")
    k(f"v_and_b32 v{t0}, 2, v{vi}")
    k(f"v_cmp_eq_u32 vcc, 0, v{t0}")
    k(f"v_cndmask_b32 v{z0+2}, 0, v{t1}, vcc")
    k(f"v_cndmask_b32 v{z0+3}, v{t1}, v{z0}, vcc")


def gen_k0():
    k = Kernel("prep_kernel")
    T4_END, T1_END, T3_END, T2_END = 64, 136, 280, 316
    nfill = (WS_FILL_END - WS_KVP1) // 1024
    NFW = (nfill + 63) // 64
    NWG = T2_END + NFW

    def fin():
        if DIAG:
            k("s_waitcnt vmcnt(0)")
            stamp(k, 1)
            stamp_flush(k)
        k("s_endpgm")
    k(f"s_cmp_ge_u32 s2, {NWG}")
    k("s_cbranch_scc1 K0_end")
    k("s_load_dwordx8 s[8:15], s[0:1], 0")
    k("s_load_dwordx4 s[16:19], s[0:1], 40")
    k("s_load_dwordx2 s[20:21], s[0:1], 56")
    k("s_load_dwordx2 s[22:23], s[0:1], 96")
    k("v_lshrrev_b32 v2, 6, v0")
    k("v_and_b32 v1, 63, v0")
    k("v_readfirstlane_b32 s3, v2")
    k("s_lshl_b32 s4, s2, 2")
    k("s_add_u32 s4, s4, s3")
    k("s_movk_i32 s40, 0x1000")
    k("s_movk_i32 s41, 0x2000")
    k("s_movk_i32 s42, 0x3000")
    k("s_movk_i32 s43, 0x4000")
    k("s_waitcnt lgkmcnt(0)")
    stamp_init(k, 0)
    stamp(k, 0)
    k(f"s_cmp_lt_u32 s2, {T4_END}")
    k("s_cbranch_scc1 K0_T4")
    k(f"s_cmp_lt_u32 s2, {T1_END}")
    k("s_cbranch_scc1 K0_T1")
    k(f"s_cmp_lt_u32 s2, {T3_END}")
    k("s_cbranch_scc1 K0_T3")
    k(f"s_cmp_lt_u32 s2, {T2_END}")
    k("s_cbranch_scc1 K0_T2")
    srd(k, 24, 22, WS_KVP1, WS_FILL_END - WS_KVP1)
    k(f"s_sub_u32 s5, s4, {T2_END*4}")
    k("s_lshl_b32 s5, s5, 14")
    k("v_lshlrev_b32 v2, 4, v1")
    k("v_add_u32 v2, s5, v2")
    for i in range(4):
        k(f"v_mov_b32 v{4+i}, -1")
    so = ["0", "s40", "s41", "s42"]
    for n in range(16):
        k(f"buffer_store_dwordx4 v[4:7], v2, s[24:27], {so[n//4]} offen offset:{(n%4)*1024}")
    fin()

    k.label("K0_T4")
    srd(k, 24, 8, 0, NB_X)
    srd(k, 28, 22, WS_XF0, NB_X)
    k("v_and_b32 v2, 7, v1")
    k("v_lshrrev_b32 v3, 3, v1")
    k("s_lshl_b32 s5, s4, 3")
    k("v_add_u32 v4, s5, v2")
    k("v_mul_u32_u24 v4, 1152, v4")
    k("v_mul_u32_u24 v6, 144, v3")
    k("v_add_u32 v6, v6, v4")
    k("v_lshrrev_b32 v7, 1, v3")
    k("v_mul_u32_u24 v7, 36, v7")
    k("v_add_u32 v4, v4, v7")
    k("v_and_b32 v7, 1, v3")
    k("v_lshl_add_u32 v4, v7, 4, v4")
    RAW, XV = 8, 44
    for m in range(8):
        k(f"buffer_load_dwordx4 {vr(RAW+4*m,4)}, v4, s[24:27], 0 offen offset:{144*m}")
    for n in range(4):
        k(f"buffer_load_dword v{RAW+32+n}, v6, s[24:27], 0 offen offset:{36*n+32}")
    k("s_lshr_b32 s6, s4, 1")
    k("s_mul_i32 s6, s6, 18432")
    k("s_and_b32 s7, s4, 1")
    k("s_lshl_b32 s7, s7, 7")
    k("s_add_u32 s6, s6, s7")
    k("v_lshlrev_b32 v5, 8, v3")
    k("v_lshl_add_u32 v5, v2, 4, v5")
    k("v_add_u32 v5, s6, v5")
    for m in range(9):
        k(f"s_waitcnt vmcnt({max(0, 11-m) if m < 8 else 0})")
        for j in range(4):
            unpack(k, XV + 8 * m + 2 * j, XV + 8 * m + 2 * j + 1, RAW + 4 * m + j)
    S = 116
    for i in range(4):
        k(f"v_pk_add_f32 {vr(S+2*i,2)}, {vr(XV+2*i,2)}, {vr(XV+8+2*i,2)}")
    for m in range(2, 9):
        for i in range(4):
            k(f"v_pk_add_f32 {vr(S+2*i,2)}, {vr(S+2*i,2)}, {vr(XV+8*m+2*i,2)}")

    def full_reduce(dst):
        k(f"v_pk_add_f32 {vr(S,2)}, {vr(S,2)}, {vr(S+2,2)}")
        k(f"v_pk_add_f32 {vr(S+4,2)}, {vr(S+4,2)}, {vr(S+6,2)}")
        k(f"v_pk_add_f32 {vr(S,2)}, {vr(S,2)}, {vr(S+4,2)}")
        k(f"v_add_f32 v{S}, v{S}, v{S+1}")
        k(f"v_add_f32_dpp v{S+1}, v{S}, v{S} row_ror:8 row_mask:0xf bank_mask:0xf")
        k(f"v_mov_b32 v{S+2}, v{S+1}")
        red_swap(k, "v_permlane16_swap_b32", S + 1, S + 2, S + 3)
        k(f"v_mov_b32 v{S+4}, v{S+3}")
        red_swap(k, "v_permlane32_swap_b32", S + 3, S + 4, dst)
    full_reduce(124)
    k("v_mul_f32 v124, 0xbae38e39, v124")
    for i in range(36):
        k(f"v_pk_add_f32 {vr(XV+2*i,2)}, {vr(XV+2*i,2)}, v[124:125] op_sel_hi:[1,0]")
    for i in range(4):
        k(f"v_pk_mul_f32 {vr(S+2*i,2)}, {vr(XV+2*i,2)}, {vr(XV+2*i,2)}")
    for m in range(1, 9):
        for i in range(4):
            x = vr(XV + 8 * m + 2 * i, 2)
            k(f"v_pk_fma_f32 {vr(S+2*i,2)}, {x}, {x}, {vr(S+2*i,2)}")
    full_reduce(126)
    k("v_mov_b32 v127, 0x3727c5ac")
    k("v_fmac_f32 v127, 0x3ae38e39, v126")
    k("v_rsq_f32 v126, v127")
    for i in range(36):
        k(f"v_pk_mul_f32 {vr(XV+2*i,2)}, {vr(XV+2*i,2)}, v[126:127] op_sel_hi:[1,0]")
    so = ["0", "s40", "s41", "s42", "s43"]
    for m in range(9):
        for j in range(4):
            k(f"v_cvt_pk_bf16_f32 v{RAW+4*m+j}, v{XV+8*m+2*j}, v{XV+8*m+2*j+1}")
        k(f"buffer_store_dwordx4 {vr(RAW+4*m,4)}, v5, s[28:31], {so[m//2]} offen offset:{(m%2)*2048}")
    fin()

    k.label("K0_T1")
    srd(k, 24, 10, 0, 576 * 1728 * 2)
    srd(k, 28, 12, 0, 32 * 648)
    srd(k, 32, 22, WS_WF, SZ_WF)
    k(f"s_sub_u32 s5, s4, {T4_END*4}")
    k("s_mul_i32 s6, s5, 171")
    k("s_lshr_b32 s6, s6, 9")
    k("s_mul_i32 s7, s6, 3")
    k("s_sub_u32 s49, s5, s7")
    k("s_mul_i32 s7, s49, 6")
    k("s_lshr_b32 s36, s6, 5")
    k("s_and_b32 s37, s6, 31")
    k("v_and_b32 v2, 15, v1")
    k("v_lshrrev_b32 v3, 4, v1")
    PB, G = 64, 72
    k("v_mul_u32_u24 v6, 288, v3")
    k("v_lshl_add_u32 v6, v2, 1, v6")
    k(f"v_mov_b32 v12, {BIG:#x}")
    k("v_cmp_gt_u32 vcc, 3, v3")
    k("v_cndmask_b32 v7, v12, v6, vcc")
    k("v_cmp_gt_u32 vcc, 2, v3")
    k("v_cndmask_b32 v8, v12, v6, vcc")
    k("v_cmp_gt_u32 vcc, 2, v2")
    k("v_cndmask_b32 v9, v12, v7, vcc")
    k("v_cndmask_b32 v10, v12, v8, vcc")
    k("s_mul_i32 s39, s37, 648")
    for ft in range(2):
        for jj in range(8):
            a = (7 if jj < 2 else 8) + 2 * ft
            k(f"buffer_load_ushort v{G+8*ft+jj}, v{a}, s[28:31], s39 offen offset:{36*jj+32*ft}")
    pl_rows(k, 4, 5, 6, 7, 2, 8, 9)
    for r in (4, 5, 6, 7):
        k(f"v_mul_u32_u24 v{r}, 3456, v{r}")
        k(f"v_lshl_add_u32 v{r}, v3, 4, v{r}")
    k("s_cmp_eq_u32 s49, 2")
    k("s_cselect_b64 vcc, -1, 0")
    k("v_cndmask_b32 v6, v4, v6, vcc")
    k("v_cndmask_b32 v7, v5, v7, vcc")
    k("s_mul_i32 s39, s36, 1152")
    k("s_mul_i32 s50, s37, 36")
    k("s_add_u32 s39, s39, s50")
    k(f"s_mul_i32 s38, s7, {36*3456}")
    k("s_add_u32 s38, s38, s39")
    AW = 16
    for q in range(6):
        if q == 4:
            k("s_cmp_eq_u32 s49, 2")
            k("s_cselect_b32 s38, s39, s38")
            k(f"s_mov_b32 s51, {36*3456}")
            k(f"s_cselect_b32 s51, {288*3456}, s51")
        a0, a1 = (4, 5) if q < 4 else (6, 7)
        k(f"buffer_load_dwordx4 {vr(AW+8*q,4)}, v{a0}, s[24:27], s38 offen")
        k(f"buffer_load_dwordx4 {vr(AW+8*q+4,4)}, v{a1}, s[24:27], s38 offen")
        if q < 4:
            k(f"s_add_u32 s38, s38, {36*3456}")
        elif q == 4:
            k("s_add_u32 s38, s38, s51")
    k("s_cmp_eq_u32 s36, 2")
    k("s_cselect_b32 s44, 1, 0")
    k("s_cmp_eq_u32 s36, 1")
    k("s_cselect_b32 s45, 1, 0")
    k("s_and_b32 s46, s37, 1")
    k("s_lshl_b32 s46, s46, 1")
    k("s_add_u32 s45, s45, s46")
    k("s_mul_i32 s46, s44, 18")
    for ft in range(2):
        d = 13 + ft
        k(f"v_add_u32 v6, {16*ft}, v2")
        k("v_cmp_lt_u32 vcc, 8, v6")
        k("v_mov_b32 v7, s44")
        k("v_cndmask_b32 v7, 0, v7, vcc")
        k("v_add_u32 v8, s45, v7")
        k("v_mul_u32_u24 v9, 9, v7")
        k("v_add_u32 v6, s46, v6")
        k("v_sub_u32 v6, v6, v9")
        k("v_lshrrev_b32 v9, 2, v6")
        k("v_and_b32 v6, 3, v6")
        k("v_lshl_add_u32 v6, v8, 2, v6")
        k("v_lshl_add_u32 v6, v3, 4, v6")
        k("v_lshlrev_b32 v6, 4, v6")
        k(f"v_lshl_add_u32 v{d}, v9, 10, v6")
    k("v_cmp_gt_u32 vcc, 2, v2")
    k("v_cndmask_b32 v14, v12, v14, vcc")
    k("s_lshr_b32 s47, s37, 1")
    k("s_mul_i32 s47, s47, 129024")
    k("s_mul_i32 s48, s7, 7168")
    k("s_add_u32 s47, s47, s48")
    k("s_cmp_eq_u32 s36, 2")
    k("s_cbranch_scc1 K0_T1_ident")
    k("s_waitcnt vmcnt(12)")
    for i in range(8):
        k(f"v_lshl_or_b32 v{PB+i}, v{G+2*i+1}, 16, v{G+2*i}")
    k("s_branch K0_T1_go")
    k.label("K0_T1_ident")
    k("v_lshlrev_b32 v6, 3, v3")
    k("v_sub_u32 v6, v2, v6")
    k("v_mov_b32 v7, 0x3f80")
    k("v_mov_b32 v8, 0x3f800000")
    for ft in range(2):
        for m in range(4):
            d = PB + 4 * ft + m
            k(f"v_cmp_eq_i32 vcc, {2*m-16*ft}, v6")
            k(f"v_cndmask_b32 v{d}, 0, v7, vcc")
            k(f"v_cmp_eq_i32 vcc, {2*m+1-16*ft}, v6")
            k(f"v_cndmask_b32 v{d}, v{d}, v8, vcc")
    k.label("K0_T1_go")
    k("s_nop 4")
    DD = 88
    for q in range(6):
        k(f"s_waitcnt vmcnt({10-2*q})")
        for ft in range(2):
            for a in range(2):
                k(f"v_mfma_f32_16x16x32_bf16 {vr(DD+16*q+8*ft+4*a,4)}, {vr(AW+8*q+4*a,4)}, {vr(PB+4*ft,4)}, 0")
    for q in range(6):
        for ft in range(2):
            o = AW + 8 * q + 4 * ft
            for j in range(4):
                b = DD + 16 * q + 8 * ft + 2 * j
                k(f"v_cvt_pk_bf16_f32 v{o+j}, v{b}, v{b+1}")
            k(f"buffer_store_dwordx4 {vr(o,4)}, v{13+ft}, s[32:35], s47 offen")
        if q < 5:
            k("s_add_u32 s47, s47, 7168")
    fin()

    k.label("K0_T3")
    srd(k, 24, 16, 0, NB_X)
    srd(k, 28, 18, 0, NB_X)
    srd(k, 32, 20, 0, 576 * 8)
    srd(k, 36, 22, WS_UT, NB_X)
    k(f"s_sub_u32 s5, s4, {T1_END*4}")
    k("s_lshr_b32 s6, s5, 6")
    k("s_and_b32 s7, s5, 63")
    k("v_and_b32 v2, 15, v1")
    k("v_lshrrev_b32 v3, 4, v1")
    k("s_lshl_b32 s44, s7, 5")
    k("v_lshlrev_b32 v4, 3, v3")
    k("v_add_u32 v4, s44, v4")
    k("v_mul_u32_u24 v5, 1152, v4")
    k("s_lshl_b32 s45, s6, 7")
    k("v_lshl_add_u32 v5, v2, 3, v5")
    k("v_add_u32 v5, s45, v5")
    k("v_add_u32 v6, 4608, v5")
    k("v_subrev_u32 v7, 3456, v5")
    k("v_subrev_u32 v8, 2304, v5")
    k("v_subrev_u32 v9, 1152, v5")
    KR, VR, WR = 16, 38, 56
    for n in range(3):
        k(f"buffer_load_dwordx2 {vr(KR+2*n,2)}, v{7+n}, s[24:27], 0 offen")
    for n in range(8):
        k(f"buffer_load_dwordx2 {vr(KR+6+2*n,2)}, v{5+n//4}, s[24:27], 0 offen offset:{(n%4)*1152}")
    k("s_lshl_b32 s46, s6, 9")
    k("v_lshlrev_b32 v10, 5, v2")
    k(f"buffer_load_dwordx4 {vr(WR,4)}, v10, s[32:35], s46 offen")
    k(f"buffer_load_dwordx4 {vr(WR+4,4)}, v10, s[32:35], s46 offen offset:16")
    for n in range(8):
        k(f"buffer_load_dwordx2 {vr(VR+2*n,2)}, v{5+n//4}, s[28:31], 0 offen offset:{(n%4)*1152}")
    k("s_lshl_b32 s47, s6, 18")
    k("v_lshlrev_b32 v11, 14, v2")
    k("v_add_u32 v11, s47, v11")
    k("v_lshlrev_b32 v12, 1, v4")
    k("v_sub_u32 v11, v11, v12")
    k("v_add_u32 v11, 4080, v11")
    KF, WF_, VF, U = 64, 108, 124, 156
    k("s_waitcnt vmcnt(10)")
    for n in range(11):
        for j in range(2):
            unpack(k, KF + 4 * n + 2 * j, KF + 4 * n + 2 * j + 1, KR + 2 * n + j)
    k("s_waitcnt vmcnt(8)")
    for c in range(4):
        unpack(k, WF_ + 0 + c, WF_ + 4 + c, WR + 2 * c)
        unpack(k, WF_ + 8 + c, WF_ + 12 + c, WR + 2 * c + 1)
    for rho in range(8):
        for p in range(2):
            d = vr(U + 4 * rho + 2 * p, 2)
            for tau in range(4):
                kk = vr(KF + 4 * (rho + 3 - tau) + 2 * p, 2)
                w = vr(WF_ + 4 * tau + 2 * p, 2)
                if tau == 0:
                    k(f"v_pk_mul_f32 {d}, {kk}, {w}")
                else:
                    k(f"v_pk_fma_f32 {d}, {kk}, {w}, {d}")
    k("s_waitcnt vmcnt(0)")
    for n in range(8):
        for j in range(2):
            unpack(k, VF + 4 * n + 2 * j, VF + 4 * n + 2 * j + 1, VR + 2 * n + j)
    for i in range(16):
        k(f"v_pk_mul_f32 {vr(U+2*i,2)}, {vr(U+2*i,2)}, {vr(VF+2*i,2)}")
    so = ["0", "s40", "s41", "s42"]
    for c in range(4):
        o = KR + 4 * c
        for m in range(4):
            k(f"v_cvt_pk_bf16_f32 v{o+m}, v{U+4*(7-2*m)+c}, v{U+4*(6-2*m)+c}")
        k(f"buffer_store_dwordx4 {vr(o,4)}, v11, s[36:39], {so[c]} offen")
    fin()

    k.label("K0_T2")
    srd(k, 24, 14, 0, 576 * 576 * 2)
    srd(k, 28, 22, WS_WOF, SZ_WOF)
    k(f"s_sub_u32 s5, s4, {T3_END*4}")
    k("s_lshr_b32 s6, s5, 3")
    k("s_and_b32 s7, s5, 7")
    k("v_and_b32 v2, 15, v1")
    k("v_lshrrev_b32 v3, 4, v1")
    pl_rows(k, 4, 5, 6, 7, 2, 8, 9)
    k("s_cmp_ge_u32 s6, 16")
    k("s_cselect_b64 vcc, -1, 0")
    k("v_cndmask_b32 v4, v4, v6, vcc")
    k("v_cndmask_b32 v5, v5, v7, vcc")
    k("s_mul_i32 s36, s6, 36")
    k("s_sub_u32 s37, s6, 16")
    k("s_mul_i32 s37, s37, 288")
    k("s_cmp_ge_u32 s6, 16")
    k("s_cselect_b32 s36, s37, s36")
    k("s_mul_i32 s36, s36, 1152")
    k("s_mul_i32 s37, s7, 144")
    k("s_add_u32 s37, s37, s36")
    k("v_mul_u32_u24 v6, 36, v3")
    k("v_mul_u32_u24 v4, 1152, v4")
    k("v_mul_u32_u24 v5, 1152, v5")
    k("v_add_u32 v4, v4, v6")
    k("v_add_u32 v5, v5, v6")
    AW = 16
    for m in range(3):
        for a in range(2):
            k(f"buffer_load_dwordx4 {vr(AW+8*m+4*a,4)}, v{4+a}, s[24:27], s37 offen offset:{16*m}")
    sel_frags(k, 8, 2, 3, 6, 7)
    k("s_mul_i32 s38, s7, 92160")
    k("s_mul_i32 s39, s6, 5120")
    k("s_add_u32 s38, s38, s39")
    k("s_add_u32 s39, s38, 0x1000")
    k("v_lshlrev_b32 v14, 4, v1")
    k("s_waitcnt vmcnt(0)")
    DD = 48
    for t in range(5):
        m, b = t // 2, t % 2
        for a in range(2):
            sel = "v[10:13]" if b == 0 else "v[8:11]"
            k(f"v_mfma_f32_16x16x32_bf16 {vr(DD+8*t+4*a,4)}, {vr(AW+8*m+4*a,4)}, {sel}, 0")
    for t in range(5):
        o = AW + 4 * t
        for j in range(4):
            bb = DD + 8 * t + 2 * j
            k(f"v_cvt_pk_bf16_f32 v{o+j}, v{bb}, v{bb+1}")
        k(f"buffer_store_dwordx4 {vr(o,4)}, v14, s[28:31], {'s38' if t < 4 else 's39'} offen offset:{(t%4)*1024}")
    fin()
    k.label("K0_end")
    k("s_endpgm")
    return k, NWG, 0


TB_PITCH = 232
L_KVST, L_KVS, L_ZERO, L_DUMMY, L_TB = 0, 3328, 6656, 6784, 8192
WCH = [(0, 4), (4, 4), (8, 2), (10, 4), (14, 4)]
WPOS = [0, 28672, 57344, 71680, 100352]
WO_SEG = [(0, 34, 129024), (34, 32, 38912), (66, 24, 71680)]
CONV_L = [102400, L_TB]
H0_OFF, H1_OFF, U0_OFF, U1_OFF = 0, 4224, 8448, 13024
AWB, NWB = 72, 10


def wo_lds(f):
    for f0, n, base in WO_SEG:
        if f0 <= f < f0 + n:
            return base + (f - f0) * 1024
    raise ValueError


def w_lds(ka, t):
    for ci, (k0, n) in enumerate(WCH):
        if k0 <= ka < k0 + n:
            return WPOS[ci] + ((ka - k0) * 7 + t) * 1024, ci
    raise ValueError


def gen_main():
    k = Kernel("main_kernel")
    k.vm = []
    WS = "s[24:27]"
    XB = lambda ka, rtl: 96 + (2 * (17 - ka) + rtl) * 4
    ACC = 40
    st = {"done": 0}

    def vreset():
        k.vm = []
        st["done"] = 0

    def issue(item):
        text, tag = item
        k(text)
        k.vm.append(tag)

    def vwait(tag):
        idx = max(i for i, t in enumerate(k.vm) if t == tag)
        if idx + 1 > st["done"]:
            k(f"s_waitcnt vmcnt({len(k.vm) - idx - 1})")
            st["done"] = idx + 1

    def vwait0(extra=""):
        k("s_waitcnt vmcnt(0)" + extra)
        vreset()

    def lds_ref(a):
        if a < 65536:
            return "v2", a
        if a < 131072:
            return "v5", a - 65536
        return "v12", a - 131072

    def spin_tail(cnt, label, sleep=1):
        k(f"s_add_u32 {cnt}, {cnt}, 1")
        k(f"s_cmp_lt_u32 {cnt}, {SPIN_MAX}")
        if sleep:
            k(f"s_sleep {sleep}")
        k(f"s_cbranch_scc1 {label}")

    k("s_cmp_ge_u32 s2, 256")
    k("s_cbranch_scc1 M_end")
    k("s_load_dwordx2 s[22:23], s[0:1], 96")
    k("s_load_dwordx2 s[20:21], s[0:1], 0")
    k("s_load_dwordx4 s[52:55], s[0:1], 64")
    k("s_load_dwordx2 s[56:57], s[0:1], 80")
    k("v_lshrrev_b32 v2, 6, v0")
    k("v_and_b32 v1, 63, v0")
    k("v_readfirstlane_b32 s3, v2")
    k("s_and_b32 s4, s2, 7")
    k("s_lshr_b32 s5, s2, 3")
    k("s_lshr_b32 s6, s4, 1")
    k("s_lshl_b32 s6, s6, 2")
    k("s_and_b32 s7, s5, 3")
    k("s_add_u32 s6, s6, s7")
    k("s_and_b32 s7, s4, 1")
    k("s_lshl_b32 s7, s7, 3")
    k("s_lshr_b32 s8, s5, 2")
    k("s_add_u32 s7, s7, s8")
    k("v_lshlrev_b32 v2, 4, v1")
    k("s_lshl_b32 s8, s6, 3")
    k("s_lshl_b32 s9, s3, 1")
    k("s_add_u32 s8, s8, s9")
    k("s_getpc_b64 s[86:87]")
    k.label("M_pc")
    k("s_lshl_b32 s88, s5, 2")
    k("s_add_u32 s88, s88, s3")
    k("s_and_b32 s88, s88, 63")
    k("s_lshl_b32 s88, s88, 10")
    k("s_min_u32 s88, s88, M_end - M_pc - 1024")
    k("v_add_u32 v3, s88, v2")
    issue(("global_load_dwordx4 a[112:115], v3, s[86:87]", "PF"))
    k("s_mul_i32 s9, s8, 18432")
    k("s_mul_i32 s10, s7, 129024")
    k("s_mul_i32 s11, s3, 7168")
    k(f"s_add_u32 s58, s9, {WS_XF0:#x}")
    k("s_mov_b32 s59, 0")
    k("s_mov_b32 s60, 0")
    k("s_waitcnt lgkmcnt(0)")
    srd(k, 24, 22, 0, WS_END)
    stamp_init(k, 1)
    stamp(k, 0)

    def xloads(ka, flags=""):
        return [(f"s_add_u32 s12, s58, {rtl*18432+ka*1024}\nbuffer_load_dwordx4 {vr(XB(ka,rtl),4)}, v2, {WS}, s12 offen {flags}", f"X{ka}")
                for rtl in range(2)]

    def dma_group(pre, cnt, tag):
        out = []
        for i in range(cnt):
            if i and i % 4 == 0:
                pre = "s_add_u32 s13, s13, 4096\ns_add_u32 s14, s14, 4096\n"
            out.append((pre + f"s_mov_b32 m0, s13\nbuffer_load_dwordx4 v2, {WS}, s14 offen offset:{(i%4)*1024} lds", tag))
            pre = ""
        return out

    def wloads(ci):
        k0, n = WCH[ci]
        if n == 4:
            pre = f"s_add_u32 s13, s11, {WPOS[ci]}\ns_add_u32 s14, s11, {k0*7168}\n"
            cnt = 7
        else:
            pre = f"s_lshl_b32 s13, s3, 12\ns_min_u32 s13, s13, 10240\ns_add_u32 s14, s13, {k0*7168}\ns_add_u32 s13, s13, {WPOS[ci]}\n"
            cnt = 4
        return dma_group(pre + "s_add_u32 s14, s14, s10\n", cnt, f"W{ci}")

    def woloads(seg):
        f0, n, base = WO_SEG[seg]
        per = (n + 3) // 4
        pre = f"s_mul_i32 s13, s3, {per*1024}\ns_min_u32 s13, s13, {(n-per)*1024}\ns_add_u32 s14, s13, s61\n"
        if f0:
            pre += f"s_add_u32 s14, s14, {f0*1024}\n"
        pre += f"s_add_u32 s13, s13, {base}\n"
        return dma_group(pre, per, "WO")

    def xl(lo, hi, fl=""):
        return [x for ka in range(lo, hi) for x in xloads(ka, fl)]

    l0 = []
    for ci, (k0, n) in enumerate(WCH):
        l0 += wloads(ci) + xl(k0, k0 + n)
    NINIT = 38
    for x in l0[:NINIT]:
        issue(x)
    k("s_lshr_b32 s16, s7, 3")
    k("s_lshl_b32 s17, s6, 1")
    k("s_add_u32 s16, s16, s17")
    k("s_and_b32 s17, s7, 7")
    k("s_lshl_b32 s18, s16, 2")
    k("s_add_u32 s18, s18, s3")
    k("s_mul_i32 s19, s18, 18432")
    k("s_mul_i32 s61, s17, 92160")
    k(f"s_add_u32 s61, s61, {WS_WOF:#x}")
    srd(k, 28, 20, 0, NB_X)
    srd(k, 32, 56, 0, NB_X)
    srd(k, 36, 52, 0, NB_X)
    srd(k, 40, 54, 0, 1152)
    k(f"s_mov_b32 s44, {LOG2E:#x}")
    k(f"s_mov_b32 s45, {LOG2E:#x}")
    k("v_and_b32 v3, 15, v1")
    k("v_lshrrev_b32 v4, 4, v1")
    k("v_add_u32 v5, 0x10000, v2")
    k("v_add_u32 v12, 0x20000, v2")
    k("s_lshl_b32 s80, s3, 5")
    k("v_add_u32 v6, s80, v3")
    k(f"v_mul_u32_u24 v6, {TB_PITCH}, v6")
    k("v_mul_u32_u24 v7, 20, v4")
    k("v_add_u32 v7, v7, v6")
    k("v_add_u32 v7, 144, v7")
    k("v_lshrrev_b32 v8, 1, v4")
    k("v_mul_u32_u24 v8, 72, v8")
    k("v_add_u32 v6, v6, v8")
    k("v_bfe_u32 v8, v1, 2, 2")
    k("v_and_b32 v9, 1, v4")
    k("v_lshl_add_u32 v8, v9, 2, v8")
    k("v_lshlrev_b32 v8, 2, v8")
    k("v_and_b32 v9, 2, v4")
    k("v_add_u32 v8, v8, v9")
    k(f"v_mul_u32_u24 v8, {TB_PITCH}, v8")
    k("v_and_b32 v9, 3, v1")
    k("v_lshl_add_u32 v8, v9, 3, v8")
    k("s_lshr_b32 s80, s3, 1")
    k("s_and_b32 s81, s3, 1")
    k("s_mul_i32 s82, s80, 72")
    k("v_add_u32 v9, s82, v8")
    k("s_mul_i32 s82, s80, 40")
    k("s_lshl_b32 s83, s81, 5")
    k("s_add_u32 s82, s82, s83")
    k("s_add_u32 s82, s82, 144")
    k("v_add_u32 v8, s82, v8")
    k("s_mul_i32 s82, s80, 19")
    k("s_lshl_b32 s83, s81, 4")
    k("s_add_u32 s82, s82, s83")
    k("v_add_u32 v10, s82, v3")
    k("v_mul_u32_u24 v10, 80, v10")
    k("v_lshl_add_u32 v10, v4, 3, v10")
    k("s_cmp_eq_u32 s81, 0")
    k("s_cselect_b32 s83, 16, 3")
    k(f"v_mov_b32 v16, {L_DUMMY}")
    k("v_cmp_gt_u32 vcc, s83, v3")
    k("v_cndmask_b32 v10, v16, v10, vcc")
    k("v_cmp_gt_u32 vcc, 2, v4")
    k("v_cndmask_b32 v11, v16, v10, vcc")
    k("s_mul_i32 s46, s82, 80")
    k("s_mul_i32 s47, s83, 5")
    k("v_lshrrev_b32 v16, 2, v3")
    k("v_and_b32 v17, 3, v3")
    k("v_and_b32 v18, 1, v16")
    k("v_lshrrev_b32 v19, 1, v16")
    k("v_mul_u32_u24 v19, 19, v19")
    k("v_cmp_eq_u32 s[62:63], 1, v18")
    k("v_add_u32 v20, 9, v17")
    k("v_cmp_eq_u32 vcc, 0, v17")
    k("v_mov_b32 v21, 8")
    k("v_cndmask_b32 v20, v20, v21, vcc")
    k("v_cndmask_b32 v13, v17, v20, s[62:63]")
    k("v_add_u32 v20, 13, v17")
    k("v_add_u32 v21, 4, v17")
    k("v_cndmask_b32 v14, v21, v20, s[62:63]")
    k("v_add_u32 v20, 17, v17")
    k("v_mov_b32 v21, 9")
    k("v_cmp_eq_u32 vcc, 2, v17")
    k("v_cndmask_b32 v15, v20, v21, vcc")
    for a in (13, 14, 15):
        k(f"v_add_u32 v{a}, v{a}, v19")
        k(f"v_mul_u32_u24 v{a}, 80, v{a}")
        k(f"v_add_u32 v{a}, {L_KVS}, v{a}")
    k(f"v_mov_b32 v21, {L_ZERO}")
    k("v_cmp_eq_u32 vcc, 3, v17")
    k("v_cndmask_b32 v15, v15, v21, vcc")
    k("v_lshlrev_b32 v20, 1, v18")
    k("v_cmp_lt_u32 vcc, v17, v20")
    k("v_cndmask_b32 v15, v15, v21, vcc")
    k("v_and_b32 v20, 2, v16")
    k("v_cmp_ne_u32 vcc, v20, v4")
    for a in (13, 14, 15):
        k(f"v_cndmask_b32 v{a}, v{a}, v21, vcc")
    k("v_and_b32 v16, 1, v4")
    k("v_cmp_eq_u32 vcc, 0, v16")
    k("v_cndmask_b32 v240, 0, 1.0, vcc")
    k(f"v_mov_b32 v241, {BIG:#x}")
    k("v_cmp_gt_u32 vcc, 16, v1")
    k("v_lshlrev_b32 v17, 3, v3")
    k("v_cndmask_b32 v242, v241, v17, vcc")
    k("v_lshlrev_b32 v18, 7, v3")
    k("v_add_u32 v18, 124, v18")
    k("v_cndmask_b32 v249, v241, v18, vcc")
    k("v_lshrrev_b32 v18, 3, v3")
    k("v_mul_u32_u24 v18, 18432, v18")
    k("v_and_b32 v19, 7, v3")
    k("v_lshl_add_u32 v18, v19, 8, v18")
    k("v_add_u32 v18, 252, v18")
    k("v_cndmask_b32 v250, v241, v18, vcc")
    k("v_lshl_add_u32 v251, v4, 8, v17")
    k("v_lshlrev_b32 v16, 4, v3")
    k("s_lshl_b32 s80, s18, 4")
    k("v_add_u32 v243, s80, v3")
    k("v_mul_u32_u24 v243, 1152, v243")
    k("v_mad_u32_u24 v243, v4, 36, v243")
    k("s_mul_i32 s48, s17, 144")
    k("v_lshl_add_u32 v244, v4, 9, v16")
    k("v_lshl_add_u32 v245, v4, 2, v16")
    k("v_lshrrev_b32 v17, 2, v3")
    k("v_mul_u32_u24 v17, 18, v17")
    k("v_lshrrev_b32 v18, 1, v4")
    k("v_lshl_add_u32 v17, v18, 2, v17")
    k("v_and_b32 v18, 3, v3")
    k("v_add_u32 v17, v17, v18")
    k("v_lshlrev_b32 v17, 12, v17")
    k("v_and_b32 v18, 1, v4")
    k("v_lshl_add_u32 v246, v18, 4, v17")
    k("v_cmp_gt_u32 vcc, 2, v4")
    k("v_cndmask_b32 v247, v241, v246, vcc")
    k(f"s_mul_i32 s49, s17, {72*4096}")
    k("s_lshl_b32 s80, s18, 5")
    k("s_add_u32 s49, s49, s80")
    k(f"s_add_u32 s49, s49, {WS_YT:#x}")
    k("s_lshl_b32 s80, s3, 9")
    k("v_lshlrev_b32 v248, 5, v3")
    k("v_lshl_add_u32 v248, v4, 3, v248")
    k("v_add_u32 v248, s80, v248")
    k("s_lshl_b32 s50, s16, 14")
    k(f"s_add_u32 s50, s50, {WS_ST1:#x}")
    k("s_mul_i32 s80, s3, 768")
    k(f"v_mul_u32_u24 v252, {KVB}, v4")
    k("v_add_u32 v252, v252, v16")
    k("v_add_u32 v252, s80, v252")
    k("s_cmp_eq_u32 s3, 3")
    k("s_cselect_b32 s81, 14, 16")
    k("v_cmp_gt_u32 vcc, s81, v3")
    k("v_cndmask_b32 v253, v241, v252, vcc")
    k("s_mul_i32 s84, s7, 36")
    k("s_lshl_b32 s64, s6, 1")
    k("s_add_u32 s64, s64, s84")
    k("s_lshr_b32 s80, s3, 1")
    k("s_add_u32 s64, s64, s80")
    k("s_add_u32 s84, s84, 32")
    k("s_add_u32 s84, s84, s6")
    k(f"s_mov_b32 s65, {CONV_L[0]}")
    k("s_cmp_eq_u32 s80, 0")
    k(f"s_cselect_b32 s65, s65, {CONV_L[1]}")
    k("s_and_b32 s66, s3, 1")
    k("s_lshl_b32 s70, s7, 7")
    k("s_add_u32 s70, s70, s9")
    k("s_add_u32 s70, s70, 16384")
    k("s_lshl_b32 s71, s17, 11")
    k("s_add_u32 s71, s71, s19")
    k(f"s_add_u32 s71, s71, {WS_XF2:#x}")
    k("s_lshl_b32 s72, s17, 8")
    k("s_add_u32 s72, s72, s19")
    k(f"s_add_u32 s72, s72, {WS_XF2+16384:#x}")
    k("s_lshl_b32 s74, s7, 4")
    k("s_add_u32 s73, s74, s6")
    k(f"s_mul_i32 s73, s73, {KVB}")
    k(f"s_mul_i32 s74, s74, {KVB}")
    k(f"s_add_u32 s73, s73, {WS_KVP1:#x}")
    k(f"s_add_u32 s74, s74, {WS_KVP1:#x}")
    stamp(k, 1)

    CS = 200

    def conv_loads(quad):
        ch = "s84" if quad else "s64"
        nq = 1 if quad else 2
        part = "s_lshl_b32 s12, s3, 10\n" if quad else "s_lshl_b32 s12, s66, 11\n"
        out = []
        pre = f"s_lshl_b32 s67, {ch}, 12\n" + part + f"s_add_u32 s68, s67, s12\ns_add_u32 s69, s68, {WS_UT:#x}\n"
        for q in range(nq):
            out.append((pre + f"buffer_load_dwordx4 {vr(CS+4*q,4)}, v2, s[36:39], s68 offen offset:{1024*q}", "CV"))
            pre = ""
        pre = "v_subrev_u32 v236, 4, v2\ns_cmp_eq_u32 s12, 0\ns_cselect_b32 s12, 0, -1\nv_cmp_eq_u32 vcc, s12, v1\n" \
              "v_add_u32 v237, s68, v236\nv_cndmask_b32 v236, v237, v241, vcc\n"
        out.append((pre + f"buffer_load_dword v{CS+8}, v236, s[36:39], 0 offen", "CV"))
        if not quad:
            out.append((f"buffer_load_dword v{CS+9}, v237, s[36:39], 0 offen offset:1024", "CV"))
        for q in range(nq):
            out.append((f"buffer_load_dwordx4 {vr(CS+10+4*q,4)}, v2, {WS}, s69 offen offset:{1024*q+4}", "CV"))
        for q in range(nq):
            out.append((f"buffer_load_dwordx4 {vr(CS+18+4*q,4)}, v2, {WS}, s69 offen offset:{1024*q}", "CV"))
        out.append((f"s_lshl_b32 s12, {ch}, 1\nv_mov_b32 v238, 0\nbuffer_load_ushort v{CS+26}, v238, s[40:43], s12 offen", "CV"))
        return out

    def neg1(base):
        return "".join(f"v_mov_b32 v{base+i}, -1\n" for i in range(4))

    def fills_a():
        D = "v[228:231]"
        out = []
        pre = neg1(228) + "s_mul_i32 s12, s3, 768\nv_add_u32 v232, s12, v2\nv_cmp_gt_u32 vcc, 48, v1\nv_cndmask_b32 v232, v241, v232, vcc\n" \
            f"s_add_u32 s12, s73, {L_DELTA:#x}\n"
        out.append((pre + f"buffer_store_dwordx4 {D}, v232, {WS}, s12 offen sc1", "FA"))
        pre = f"s_lshl_b32 s12, s64, 12\ns_lshl_b32 s15, s66, 11\ns_add_u32 s12, s12, s15\ns_add_u32 s12, s12, {WS_YT:#x}\n"
        out.append((pre + f"buffer_store_dwordx4 {D}, v2, {WS}, s12 offen sc1", "FA"))
        out.append((f"buffer_store_dwordx4 {D}, v2, {WS}, s12 offen offset:1024 sc1", "FA"))
        pre = f"s_lshl_b32 s12, s84, 12\ns_lshl_b32 s15, s3, 10\ns_add_u32 s12, s12, s15\ns_add_u32 s12, s12, {WS_YT:#x}\n" \
              f"s_cmp_lt_u32 s6, 4\ns_cselect_b32 s12, s12, {BIG:#x}\n"
        out.append((pre + f"buffer_store_dwordx4 {D}, v2, {WS}, s12 offen sc1", "FA"))
        return out

    def fills_b(D0, T0):
        D = vr(D0, 4)
        out = []
        pre = neg1(D0) + f"v_and_b32 v{T0}, 31, v1\nv_lshlrev_b32 v{T0}, 4, v{T0}\nv_lshrrev_b32 v{T0+1}, 5, v1\nv_lshl_add_u32 v{T0}, v{T0+1}, 19, v{T0}\n" \
            "s_lshl_b32 s12, s17, 11\ns_add_u32 s12, s12, s50\ns_lshl_b32 s15, s3, 9\ns_add_u32 s12, s12, s15\n"
        out.append((pre + f"buffer_store_dwordx4 {D}, v{T0}, {WS}, s12 offen sc1", "FB"))
        out.append((f"buffer_store_dwordx4 {D}, v244, {WS}, s71 offen sc1", "FB"))
        out.append((f"buffer_store_dwordx4 {D}, v244, {WS}, s71 offen offset:256 sc1", "FB"))
        out.append((f"buffer_store_dword v{D0}, v245, {WS}, s72 offen sc1", "FB"))
        return out

    def fills_c(D0):
        D = vr(D0, 4)
        out = []
        pre = neg1(D0) + f"s_lshl_b32 s12, s7, 10\ns_add_u32 s12, s12, s9\ns_add_u32 s12, s12, {WS_OF2:#x}\n"
        out.append((pre + f"buffer_store_dwordx4 {D}, v2, {WS}, s12 offen sc1", "FC"))
        out.append((f"s_add_u32 s12, s12, 18432\nbuffer_store_dwordx4 {D}, v2, {WS}, s12 offen sc1", "FC"))
        out.append((f"s_add_u32 s12, s70, {WS_OF2:#x}\nbuffer_store_dwordx2 {vr(D0,2)}, v242, {WS}, s12 offen sc1", "FC"))
        out.append((f"s_add_u32 s12, s12, 18432\nbuffer_store_dwordx2 {vr(D0,2)}, v242, {WS}, s12 offen sc1", "FC"))
        return out

    def gemm_a(layer, sched):
        seq = [(ka, t) for ka in range(18) for t in range(7)]
        ready = {"c": -1}

        def rd(i):
            ka, t = seq[i]
            a, ci = w_lds(ka, t)
            if layer == 0 and ci > ready["c"]:
                ready["c"] = ci
                vwait(f"W{ci}")
                k("s_barrier")
                if ci == 0:
                    stamp(k, 2)
            b, off = lds_ref(a)
            k(f"ds_read_b128 {ar(AWB+4*(i%NWB),4)}, {b} offset:{off}")
        pre = NWB - 1
        for i in range(pre):
            rd(i)
        for i, (ka, t) in enumerate(seq):
            if t == 0:
                vwait(f"X{ka}")
            issued = min(i + pre, len(seq))
            k(f"s_waitcnt lgkmcnt({issued - i - 1})")
            for rtl in range(2):
                acc = vr(ACC + (rtl * 7 + t) * 4, 4)
                c = "0" if ka == 0 else acc
                k(f"v_mfma_f32_16x16x32_bf16 {acc}, {ar(AWB+4*(i%NWB),4)}, {vr(XB(ka,rtl),4)}, {c}")
            for x in sched.get(i, []):
                issue(x)
            if i in (27, 55, 83, 111, 125):
                stamp(k, 24 + (27, 55, 83, 111, 125).index(i))
            if i + pre < len(seq):
                rd(i + pre)

    sched = {}
    for n, x in enumerate(l0[NINIT:]):
        sched.setdefault(2 * n, []).append(x)
    x0l = [(f"buffer_load_dwordx4 a[0:3], v243, s[28:31], s48 offen", "X0"),
           (f"buffer_load_dwordx4 a[4:7], v243, s[28:31], s48 offen offset:16", "X0"),
           (f"buffer_load_dword a8, v243, s[28:31], s48 offen offset:32", "X0")]
    for n, x in enumerate(fills_a()):
        sched.setdefault(104 + 4 * n, []).append(x)
    gemm_a(0, sched)
    vm_l0 = list(k.vm)
    k("s_branch M_feat")

    k.label("M_gemm1")
    vreset()
    x1 = xl(0, 18, "sc1")
    for x in x1[:10]:
        issue(x)
    stamp(k, 1)
    sched = {}
    for n, x in enumerate(x1[10:]):
        sched.setdefault(3 * n, []).append(x)
    gemm_a(1, sched)
    k(f"v_add_f32 v16, v{ACC}, v{ACC+28}")
    k("v_cmp_u_f32 vcc, v16, v16")
    k("s_nop 1")
    k("s_cbranch_vccz M_gemm1_ok")
    k("s_add_u32 s75, s75, 1")
    k("s_cmp_lt_u32 s75, 4")
    k("s_cbranch_scc1 M_xretry")
    k.label("M_gemm1_ok")
    k("s_barrier")

    k.label("M_feat")
    k.vm = vm_l0
    st["done"] = 0
    k("s_nop 7")
    stamp(k, 3)
    wo_rest = conv_loads(False) + woloads(0)
    cnt = {"n": 0}

    def kv(text):
        k(text)
        cnt["n"] += 1
        if cnt["n"] % 15 == 0 and wo_rest:
            lab = "M_sk%d" % cnt["n"]
            k("s_cmp_eq_u32 s60, 0")
            k(f"s_cbranch_scc0 {lab}")
            issue(wo_rest.pop(0))
            k.label(lab)
    F, E, VP, M = 96, 136, 176, 16
    for i in range(4):
        k(f"v_mov_b32 v{30+i}, 0")
    k(f"v_mov_b32 v34, {L_ZERO}")
    k("v_lshl_add_u32 v34, v3, 4, v34")
    k("s_mov_b64 exec, 0x1f")
    k("ds_write_b128 v34, v[30:33]")
    k("s_mov_b64 exec, -1")
    for rtl in range(2):
        P = ACC + rtl * 28
        Fb = F + 20 * rtl
        for (op, d) in (("v_max3_f32", M), ("v_min3_f32", M + 2)):
            kv(f"{op} v{d}, v{P}, v{P+1}, v{P+2}")
            kv(f"{op} v{d+1}, v{P+3}, v{P+4}, v{P+5}")
            for n in range(6, 18, 4):
                kv(f"{op} v{d}, v{d}, v{P+n}, v{P+n+1}")
                kv(f"{op} v{d+1}, v{d+1}, v{P+n+2}, v{P+n+3}")
        kv(f"v_max_f32 v{M}, v{M}, v{M+1}")
        kv(f"v_min_f32 v{M+2}, v{M+2}, v{M+3}")
        kv(f"v_mul_f32 v{M}, {LOG2E ^ 0x80000000:#x}, v{M}")
        kv(f"v_mul_f32 v{M+2}, {LOG2E:#x}, v{M+2}")
        for n in range(0, 18, 2):
            kv(f"v_pk_fma_f32 {vr(E+n,2)}, {vr(P+n,2)}, s[44:45], {vr(M,2)} op_sel_hi:[1,0,0]")
        for n in range(0, 18, 2):
            kv(f"v_pk_fma_f32 {vr(E+18+n,2)}, {vr(P+n,2)}, s[44:45], {vr(M+2,2)} op_sel_hi:[1,0,0] neg_lo:[1,0,0] neg_hi:[1,0,0]")
        for n in range(36):
            kv(f"v_exp_f32 v{E+n}, v{E+n}")
        for half in range(2):
            b = E + 18 * half
            d = M + 4 + 4 * half
            kv(f"v_pk_add_f32 {vr(d,2)}, {vr(b,2)}, {vr(b+2,2)}")
            kv(f"v_pk_add_f32 {vr(d+2,2)}, {vr(b+4,2)}, {vr(b+6,2)}")
            kv(f"v_pk_add_f32 {vr(d,2)}, {vr(d,2)}, {vr(b+8,2)}")
            kv(f"v_pk_add_f32 {vr(d+2,2)}, {vr(d+2,2)}, {vr(b+10,2)}")
            kv(f"v_pk_add_f32 {vr(d,2)}, {vr(d,2)}, {vr(b+12,2)}")
            kv(f"v_pk_add_f32 {vr(d+2,2)}, {vr(d+2,2)}, {vr(b+14,2)}")
            kv(f"v_pk_add_f32 {vr(d,2)}, {vr(d,2)}, {vr(b+16,2)}")
            kv(f"v_pk_add_f32 {vr(d,2)}, {vr(d,2)}, {vr(d+2,2)}")
            kv(f"v_add_f32 v{d}, v{d}, v{d+1}")
            kv(f"v_rcp_f32 v{d}, v{d}")
        for half in range(2):
            b = E + 18 * half
            d = M + 4 + 4 * half
            for n in range(0, 18, 2):
                kv(f"v_pk_mul_f32 {vr(b+n,2)}, {vr(b+n,2)}, {vr(d,2)} op_sel_hi:[1,0]")
        for m in range(18):
            kv(f"v_cvt_pk_bf16_f32 v{Fb+m}, v{E+2*m}, v{E+2*m+1}")
        k(f"v_mov_b32 v{Fb+18}, 0")
        k(f"v_mov_b32 v{Fb+19}, 0")
        Vb = VP + 6 * rtl
        for m in range(4):
            kv(f"v_cvt_pk_bf16_f32 v{Vb+m}, v{P+18+2*m}, v{P+19+2*m}")
        kv(f"v_cvt_pk_bf16_f32 v{Vb+4}, v{P+26}, v240")
        ro = rtl * 16 * TB_PITCH
        k("s_mov_b32 exec_lo, 0xffff0000")
        k("s_mov_b32 exec_hi, 0xffff0000")
        for m in range(9):
            k(f"ds_write_b64 v6, {vr(Fb+2*m,2)} offset:{L_TB+ro+8*m}")
        k("s_mov_b64 exec, -1")
        for m in range(5):
            k(f"ds_write_b32 v7, v{Vb+m} offset:{L_TB+ro+4*m}")
    assert not wo_rest
    k("s_waitcnt lgkmcnt(0)")
    stamp(k, 4)
    k("s_barrier")
    TR = 136
    for ks in range(4):
        for rho in range(2):
            o = L_TB + (32 * ks + rho) * TB_PITCH
            k(f"ds_read_b64_tr_b16 {vr(TR+16*ks+2*rho,2)}, v8 offset:{o}")
            for ft in range(3):
                k(f"ds_read_b64_tr_b16 {vr(TR+16*ks+4+4*ft+2*rho,2)}, v9 offset:{o+32*ft}")
    k("v_add_u32 v16, s46, v2")
    k("v_cmp_gt_u32 vcc, s47, v1")
    k("v_cndmask_b32 v17, v241, v16, vcc")
    k("v_add_u32 v19, 64, v1")
    k("v_cmp_gt_u32 vcc, s47, v19")
    k("v_cndmask_b32 v18, v241, v16, vcc")
    k("s_add_u32 s13, s73, s59")
    k("v_and_b32 v19, 1, v3")
    k("v_lshlrev_b32 v19, 4, v19")
    k("v_mov_b32 v20, 0x3f80")
    k("v_lshlrev_b32 v20, v19, v20")
    k("v_lshrrev_b32 v19, 1, v3")
    for i in range(4):
        k(f"v_cmp_eq_u32 vcc, {i}, v19")
        k(f"v_cndmask_b32 v{88+i}, 0, v20, vcc")
    KD = 40
    for ks in range(4):
        k(f"s_waitcnt lgkmcnt({min(15, 8*(3-ks))})")
        for ft in range(3):
            c = "0" if ks == 0 else vr(KD + 4 * ft, 4)
            k(f"v_mfma_f32_16x16x32_bf16 {vr(KD+4*ft,4)}, {vr(TR+16*ks+4+4*ft,4)}, {vr(TR+16*ks,4)}, {c}")
    KP = 52
    k("v_cmp_eq_u32 vcc, 0, v4")
    for ft in range(3):
        k(f"v_cvt_pk_bf16_f32 v{KP+2*ft}, v{KD+4*ft}, v{KD+4*ft+1}")
        k(f"v_cvt_pk_bf16_f32 v{KP+2*ft+1}, v{KD+4*ft+2}, v{KD+4*ft+3}")
    k(f"v_cndmask_b32 v{KP+4}, 0, v{KP+4}, vcc")
    k(f"v_cndmask_b32 v{KP+5}, 0, v{KP+5}, vcc")
    k(f"ds_write_b64 v10, {vr(KP,2)}")
    k(f"ds_write_b64 v10, {vr(KP+2,2)} offset:32")
    k(f"ds_write_b64 v11, {vr(KP+4,2)} offset:64")
    k("s_waitcnt lgkmcnt(0)")
    k(f"ds_read_b128 v[20:23], v16 offset:{L_KVST}")
    k(f"ds_read_b128 v[24:27], v16 offset:{L_KVST+1024}")
    vwait("FA")
    k("s_waitcnt lgkmcnt(1)")
    issue((f"buffer_store_dwordx4 v[20:23], v17, {WS}, s13 offen sc1", "PUB"))
    k("s_waitcnt lgkmcnt(0)")
    issue((f"buffer_store_dwordx4 v[24:27], v18, {WS}, s13 offen offset:1024 sc1", "PUB"))
    stamp(k, 5)
    G = 136

    def gather_loads():
        out = []
        for q in range(4):
            pre = f"s_add_u32 s14, s74, s59\n" if q == 0 else f"s_add_u32 s14, s14, {4*KVB}\n"
            for c in range(3):
                out.append((pre + f"buffer_load_dwordx4 {vr(G+4*(3*q+c),4)}, v{253 if c == 2 else 252}, {WS}, s14 offen offset:{256*c} sc1", f"G{q}"))
                pre = ""
        return out
    k("s_cmp_eq_u32 s60, 0")
    k("s_cbranch_scc0 M_l1wo")

    CA = 40
    FBUF = [136, 16]

    def conv_addrs(clsreg, base):
        k(f"v_mul_u32_u24 v230, {H1_OFF-H0_OFF}, v227")
        k(f"v_sub_u32 v230, {H1_OFF+64-8}, v230")
        k("v_lshl_add_u32 v230, v228, 3, v230")
        k("v_sub_u32 v230, v230, v229")
        k(f"s_add_u32 s12, {clsreg}, {base}")
        k("v_add_u32 v230, s12, v230")
        k(f"v_mul_u32_u24 v231, {U1_OFF-U0_OFF}, v227")
        k(f"v_add_u32 v231, {U0_OFF+504-8}, v231")
        k("v_lshlrev_b32 v232, 6, v228")
        k("v_sub_u32 v231, v231, v232")
        k("v_sub_u32 v231, v231, v229")
        k("v_add_u32 v231, s12, v231")

    def conv_stage(nq, lastcond):
        for i in range(4):
            k(f"v_mov_b32 v{16+i}, 0")
        k("s_mov_b64 exec, 0xf")
        k(f"ds_write_b128 v234, v[16:19] offset:{H0_OFF}")
        k(f"ds_write_b128 v234, v[16:19] offset:{H1_OFF}")
        k("s_mov_b64 exec, 0xfffffff")
        k(f"ds_write_b128 v234, v[16:19] offset:{U0_OFF+4096}")
        k(f"ds_write_b128 v234, v[16:19] offset:{U1_OFF+4096}")
        k("s_mov_b64 exec, -1")
        vwait("CV")
        for q in range(nq):
            k(f"ds_write_b128 v233, {vr(CS+4*q,4)} offset:{H0_OFF+64+1024*q}")
            k(f"ds_write_b128 v233, {vr(CS+18+4*q,4)} offset:{U1_OFF+1024*q}")
        for q in range(nq):
            for j in range(4):
                prev = CS + 8 + q if j == 0 else CS + 4 * q + j - 1
                k(f"v_alignbit_b32 v{20+4*q+j}, v{CS+4*q+j}, v{prev}, 16")
            k(f"ds_write_b128 v233, {vr(20+4*q,4)} offset:{H1_OFF+64+1024*q}")
        k(lastcond)
        k("s_cselect_b32 s12, 63, -1")
        k("v_cmp_eq_u32 vcc, s12, v1")
        lr = CS + 10 + 4 * (nq - 1) + 3
        k(f"v_cndmask_b32 v{lr}, v{lr}, v16, vcc")
        for q in range(nq):
            k(f"ds_write_b128 v233, {vr(CS+10+4*q,4)} offset:{U0_OFF+1024*q}")
        k(f"v_lshlrev_b32 v235, 16, v{CS+26}")
        k("s_waitcnt lgkmcnt(0)")
        k("s_barrier")

    def reads(r, base):
        out = []
        for n in range(8):
            for rho in range(2):
                out.append(f"ds_read_b64 {vr(base+4*n+2*rho,2)}, v230 offset:{64*(8*n+r)+8*(1-rho)}")
            for rho in range(2):
                out.append(f"ds_read_b64 {vr(base+32+4*n+2*rho,2)}, v231 offset:{64*(56-(8*n-r))+8*(1-rho)}")
        return out

    def conv_mfma(ncls, bufs, extras, sbase=None):
        pairs = sorted([(a, b) for a in range(8) for b in range(8 - a)], key=lambda p: (max(p), p))
        for x in reads(0, bufs[0]):
            k(x)
        seen = set()
        for r in range(ncls):
            base = bufs[r & 1]
            nxt = reads(r + 1, bufs[(r + 1) & 1]) if r < ncls - 1 else []
            ex = list(extras.get(r, []))
            lvl = -1
            nissued = 0
            for idx, (a, b) in enumerate(pairs):
                if max(a, b) > lvl:
                    lvl = max(a, b)
                    k(f"s_waitcnt lgkmcnt({min(15, 4*(7-lvl) + nissued)})")
                jt = a + b
                c = ar(CA + 4 * jt, 4) if jt in seen else "0"
                seen.add(jt)
                k(f"v_mfma_f32_16x16x32_bf16 {ar(CA+4*jt,4)}, {vr(base+4*a,4)}, {vr(base+32+4*b,4)}, {c}")
                if idx < len(nxt):
                    k(nxt[idx])
                    nissued += 1
                if ex and idx % (2 if len(extras[r]) > 9 else 4) == 1:
                    issue(ex.pop(0))
            for x in ex:
                issue(x)
            if sbase is not None:
                stamp(k, sbase + r)

    def conv_finish(ntile, src, UU, T, P, Q):
        for i in range(ntile):
            a = src + 4 * i
            unpack(k, T + 1, T + 0, UU + 2 * i + 1)
            unpack(k, T + 3, T + 2, UU + 2 * i)
            for e in range(4):
                k(f"v_fmac_f32 v{a+e}, v235, v{T+e}")
        for i in range(2 * ntile):
            k(f"v_cvt_pk_bf16_f32 v{P+i}, v{src+2*i}, v{src+2*i+1}")
        k("v_cmp_eq_u32 vcc, 1, v227")
        for p in range(ntile // 2):
            A0, A1, B0, B1 = P + 4 * p, P + 4 * p + 1, P + 4 * p + 2, P + 4 * p + 3
            k(f"v_cndmask_b32 v{T}, v{B0}, v{A0}, vcc")
            k(f"v_cndmask_b32 v{T+1}, v{B1}, v{A1}, vcc")
            k(f"v_cndmask_b32 v{T+2}, v{A0}, v{B0}, vcc")
            k(f"v_cndmask_b32 v{T+3}, v{A1}, v{B1}, vcc")
            k(f"v_mov_b32_dpp v{T+4}, v{T} quad_perm:[1,0,3,2] row_mask:0xf bank_mask:0xf")
            k(f"v_mov_b32_dpp v{T+5}, v{T+1} quad_perm:[1,0,3,2] row_mask:0xf bank_mask:0xf")
            o = Q + 4 * p
            k(f"v_cndmask_b32 v{o}, v{T+2}, v{T+4}, vcc")
            k(f"v_cndmask_b32 v{o+1}, v{T+4}, v{T+2}, vcc")
            k(f"v_cndmask_b32 v{o+2}, v{T+3}, v{T+5}, vcc")
            k(f"v_cndmask_b32 v{o+3}, v{T+5}, v{T+3}, vcc")

    k("v_and_b32 v227, 1, v3")
    k("v_lshrrev_b32 v228, 1, v3")
    k("v_lshlrev_b32 v229, 4, v4")
    k("s_lshl_b32 s15, s66, 8")
    conv_addrs("s15", "s65")
    k("s_lshl_b32 s12, s66, 11")
    k("s_add_u32 s12, s12, s65")
    k("v_add_u32 v233, s12, v2")
    k("v_add_u32 v234, s65, v2")
    k("s_barrier")
    conv_stage(2, "s_cmp_eq_u32 s66, 1")
    stamp(k, 15)
    conv_mfma(4, FBUF, {0: woloads(1), 1: woloads(2) + x0l, 2: conv_loads(True) + fills_b(80, 84), 3: gather_loads()}, 16)
    stamp(k, 6)
    k("s_barrier")
    k("s_cmp_eq_u32 s66, 0")
    k("s_cbranch_scc0 M_conv_x1")
    for i in range(4):
        k(f"ds_write_b128 v234, {ar(CA+16+4*i,4)} offset:{4096+1024*i}")
    for i in range(16):
        k(f"v_accvgpr_read_b32 v{16+i}, a{CA+i}")
    k("s_branch M_conv_x2")
    k.label("M_conv_x1")
    k("s_nop 7")
    for i in range(4):
        k(f"ds_write_b128 v234, {ar(CA+4*i,4)} offset:{1024*i}")
    for i in range(16):
        k(f"v_accvgpr_read_b32 v{16+i}, a{CA+16+i}")
    k.label("M_conv_x2")
    k("v_lshl_add_u32 v32, v227, 2, v229")
    k("v_lshl_add_u32 v32, v228, 6, v32")
    k(f"v_sub_u32 v33, {U1_OFF + 4092 - 8 - 512*3}, v32")
    k("s_lshl_b32 s12, s66, 11")
    k("s_sub_u32 s12, s65, s12")
    k("v_add_u32 v33, s12, v33")
    k("s_lshl_b32 s12, s66, 12")
    k("v_add_u32 v34, s12, v234")
    UU = 36
    for i in range(4):
        o = 512 * (3 - i)
        k(f"ds_read_b32 v{UU+2*i}, v33 offset:{o}")
        k(f"ds_read_b32 v{UU+2*i+1}, v33 offset:{o+8}")
    k("s_waitcnt lgkmcnt(0)")
    k("s_barrier")
    for i in range(4):
        k(f"ds_read_b128 {vr(48+4*i,4)}, v34 offset:{1024*i}")
    k("v_lshl_add_u32 v32, v227, 9, v229")
    k("v_lshl_add_u32 v32, v228, 6, v32")
    k("s_lshl_b32 s76, s64, 12")
    k("s_lshl_b32 s12, s66, 11")
    k("s_add_u32 s76, s76, s12")
    k(f"s_add_u32 s76, s76, {WS_YT:#x}")
    k("s_waitcnt lgkmcnt(0)")
    for i in range(8):
        k(f"v_pk_add_f32 {vr(16+2*i,2)}, {vr(16+2*i,2)}, {vr(48+2*i,2)}")
    conv_finish(4, 16, UU, 64, 72, 80)
    SUM = 40
    k("s_waitcnt vmcnt(0)")
    for q in range(4):
        for c in range(3):
            cc = "0" if q == 0 else vr(SUM + 4 * c, 4)
            k(f"v_mfma_f32_16x16x32_bf16 {vr(SUM+4*c,4)}, v[88:91], {vr(G+4*(3*q+c),4)}, {cc}")
    for p in range(2):
        k(f"buffer_store_dwordx4 {vr(80+4*p,4)}, v32, {WS}, s76 offen offset:{1024*p} sc1")
    stamp(k, 7)
    k("s_mov_b32 s75, 0")
    k("s_branch M_gchk")

    k.label("M_l1wo")
    for x in woloads(1) + woloads(2):
        k(x[0])
    k.label("M_spin1")
    vreset()
    for x in gather_loads():
        issue(x)
    for q in range(4):
        vwait(f"G{q}")
        for c in range(3):
            cc = "0" if q == 0 else vr(SUM + 4 * c, 4)
            k(f"v_mfma_f32_16x16x32_bf16 {vr(SUM+4*c,4)}, v[88:91], {vr(G+4*(3*q+c),4)}, {cc}")
    k.label("M_gchk")
    k("s_mul_i32 s14, s3, 768")
    k("v_lshlrev_b32 v16, 4, v3")
    k("v_lshl_add_u32 v16, v4, 3, v16")
    k(f"v_add_u32 v16, {L_KVS}, v16")
    k("v_add_u32 v16, s14, v16")
    k(f"v_mov_b32 v19, {L_DUMMY}")
    k("v_cmp_gt_u32 vcc, 2, v4")
    k("v_cndmask_b32 v16, v19, v16, vcc")
    k(f"v_add_f32 v17, v{SUM}, v{SUM+4}")
    k(f"v_cmp_u_f32 vcc, v17, v{SUM+8}")
    for c in range(3):
        k(f"v_cvt_pk_bf16_f32 v{20+2*c}, v{SUM+4*c}, v{SUM+4*c+1}")
        k(f"v_cvt_pk_bf16_f32 v{21+2*c}, v{SUM+4*c+2}, v{SUM+4*c+3}")
    k("s_cbranch_vccz M_got1")
    spin_tail("s75", "M_spin1", 2)
    k.label("M_got1")
    stamp(k, 8)
    for c in range(3):
        k(f"ds_write_b64 v16, {vr(20+2*c,2)} offset:{256*c}")
    k("s_waitcnt lgkmcnt(0)")
    k("s_barrier")
    AF = 136
    for p in range(5):
        for t in range(3):
            k(f"ds_read_b128 {vr(AF+4*(3*p+t),4)}, v{13+t} offset:{16*p}")
    k("s_lshl_b32 s12, s7, 10")
    k("s_add_u32 s12, s12, s9")
    k("s_add_u32 s12, s12, s59")
    k(f"s_add_u32 s12, s12, {WS_OF1:#x}")
    k("s_add_u32 s13, s70, s59")
    k(f"s_add_u32 s13, s13, {WS_OF1:#x}")
    O = 40
    for p in range(5):
        k(f"s_waitcnt lgkmcnt({3*(4-p)})")
        for t in (2, 0, 1):
            for rtl in range(2):
                acc = vr(O + 12 * rtl + 4 * t, 4)
                c = "0" if p == 0 else acc
                k(f"v_mfma_f32_16x16x32_bf16 {acc}, {vr(AF+4*(3*p+t),4)}, {vr(F+20*rtl+4*p,4)}, {c}")
    for rtl in range(2):
        o = O + 12 * rtl
        k(f"v_add_f32 v{o+10}, 0x358637bd, v{o+10}")
        k(f"v_rcp_f32 v{o+10}, v{o+10}")
    for rtl in range(2):
        o = O + 12 * rtl
        d = 20 + 8 * rtl
        for n in range(0, 10, 2):
            k(f"v_pk_mul_f32 {vr(o+n,2)}, {vr(o+n,2)}, {vr(o+10,2)} op_sel_hi:[1,0]")
        for m in range(5):
            k(f"v_cvt_pk_bf16_f32 v{d+m}, v{o+2*m}, v{o+2*m+1}")
        k(f"v_mov_b32 v{d+5}, v{d+4}")
        k(f"buffer_store_dwordx4 {vr(d,4)}, v2, {WS}, s12 offen sc1")
        k(f"v_permlane32_swap_b32 v{d+4}, v{d+5}")
        k(f"buffer_store_dwordx2 {vr(d+4,2)}, v242, {WS}, s13 offen sc1")
        if rtl == 0:
            k("s_add_u32 s12, s12, 18432")
            k("s_add_u32 s13, s13, 18432")
    stamp(k, 9)
    k("s_barrier")
    k("s_cmp_eq_u32 s60, 0")
    k("s_cbranch_scc0 M_b")
    k("s_cmp_lt_u32 s6, 4")
    k("s_cbranch_scc0 M_b")

    k.label("M_quad")
    vreset()
    k.vm.append("CV")
    st["done"] = 1
    k("s_lshl_b32 s15, s3, 7")
    conv_addrs("s15", CONV_L[0])
    k("s_lshl_b32 s12, s3, 10")
    k(f"s_add_u32 s12, s12, {CONV_L[0]}")
    k("v_add_u32 v233, s12, v2")
    k(f"v_add_u32 v234, {CONV_L[0]}, v2")
    conv_stage(1, "s_cmp_eq_u32 s3, 3")
    stamp(k, 20)
    conv_mfma(2, FBUF, {}, 21)
    k("s_lshl_b32 s12, s3, 13")
    k("v_add_u32 v34, s12, v2")
    for i in range(8):
        k(f"ds_write_b128 v34, {ar(CA+4*i,4)} offset:{1024*i}")
    k("v_lshl_add_u32 v32, v227, 2, v229")
    k("v_lshl_add_u32 v32, v228, 6, v32")
    k(f"v_sub_u32 v33, {CONV_L[0] + U1_OFF + 4092 - 8 - 512}, v32")
    k("s_lshl_b32 s12, s3, 10")
    k("v_subrev_u32 v33, s12, v33")
    k("s_lshl_b32 s12, s3, 11")
    k("v_add_u32 v34, s12, v2")
    for i in range(2):
        o = 512 * (1 - i)
        k(f"ds_read_b32 v{UU+2*i}, v33 offset:{o}")
        k(f"ds_read_b32 v{UU+2*i+1}, v33 offset:{o+8}")
    k("s_waitcnt lgkmcnt(0)")
    k("s_barrier")
    for sidx in range(4):
        for i in range(2):
            k(f"ds_read_b128 {vr(48+8*sidx+4*i,4)}, v34 offset:{8192*sidx+1024*i}")
    k("v_lshl_add_u32 v32, v227, 9, v229")
    k("v_lshl_add_u32 v32, v228, 6, v32")
    k("s_lshl_b32 s76, s84, 12")
    k("s_lshl_b32 s12, s3, 10")
    k("s_add_u32 s76, s76, s12")
    k(f"s_add_u32 s76, s76, {WS_YT:#x}")
    k("s_waitcnt lgkmcnt(0)")
    for i in range(4):
        k(f"v_pk_add_f32 {vr(48+2*i,2)}, {vr(48+2*i,2)}, {vr(56+2*i,2)}")
        k(f"v_pk_add_f32 {vr(64+2*i,2)}, {vr(64+2*i,2)}, {vr(72+2*i,2)}")
    for i in range(4):
        k(f"v_pk_add_f32 {vr(16+2*i,2)}, {vr(48+2*i,2)}, {vr(64+2*i,2)}")
    conv_finish(2, 16, UU, 64, 72, 80)
    k(f"buffer_store_dwordx4 v[80:83], v32, {WS}, s76 offen sc1")
    stamp(k, 23)
    k("s_barrier")

    k.label("M_b")
    OB, BACC, YA, SEL = 96, 40, 168, 180
    k("v_and_b32 v20, 1, v3")
    k("v_lshlrev_b32 v20, 4, v20")
    k("v_mov_b32 v21, 0x3f80")
    k("v_lshlrev_b32 v21, v20, v21")
    k("v_lshrrev_b32 v20, 3, v3")
    k("v_sub_u32 v20, v4, v20")
    k("v_bfe_u32 v22, v3, 1, 2")
    k("v_lshl_add_u32 v20, v20, 1, v22")
    k("v_lshrrev_b32 v23, 3, v3")
    k("v_xor_b32 v23, v23, v4")
    k("v_and_b32 v23, 1, v23")
    k("v_cmp_eq_u32 vcc, 0, v23")
    k("v_cndmask_b32 v21, 0, v21, vcc")
    for i in range(8):
        k(f"v_cmp_eq_u32 vcc, {i}, v20")
        k(f"v_cndmask_b32 v{SEL+i}, 0, v21, vcc")
    k("s_add_u32 s77, s19, s59")
    k(f"s_add_u32 s77, s77, {WS_OF1:#x}")
    k("s_add_u32 s15, s77, 16384")
    k("s_mov_b32 s75, 0")
    k("s_mov_b32 s78, 0")
    k.label("M_spin2")
    k(f"buffer_load_dword v20, v249, {WS}, s15 offen sc1")
    k("s_waitcnt vmcnt(0)")
    k("v_cmp_eq_u32 vcc, -1, v20")
    k("s_nop 1")
    k("s_cbranch_vccz M_got2")
    spin_tail("s75", "M_spin2", 2)
    k.label("M_got2")
    vreset()
    stamp(k, 10)
    ol = []
    for ka in range(16):
        pre = "s_mov_b32 s12, s77\n" if ka == 0 else ("s_add_u32 s12, s12, 4096\n" if ka % 4 == 0 else "")
        ol.append((pre + f"buffer_load_dwordx4 {vr(OB+4*ka,4)}, v2, {WS}, s12 offen offset:{(ka%4)*1024} sc1", f"O{ka}"))
    for e in range(2):
        for h in range(2):
            ol.append((f"buffer_load_dwordx2 {vr(OB+64+4*e+2*h,2)}, v251, {WS}, s15 offen offset:{1024*e+128*h} sc1", f"O{16+e}"))
    yl = [(f"buffer_load_dwordx4 {vr(YA,4)}, v246, {WS}, s49 offen sc1", "Y"),
          (f"s_add_u32 s12, s49, 0x8000\nbuffer_load_dwordx4 {vr(YA+4,4)}, v246, {WS}, s12 offen sc1", "Y"),
          (f"s_add_u32 s12, s49, 0x10000\nbuffer_load_dwordx4 {vr(YA+8,4)}, v247, {WS}, s12 offen sc1", "Y")]
    allb = ol + yl
    for x in allb[:10]:
        issue(x)
    rest = allb[10:]
    seq = [(ka, t) for ka in range(18) for t in range(5)]

    def rdb(i):
        ka, t = seq[i]
        b, off = lds_ref(wo_lds(ka * 5 + t))
        k(f"ds_read_b128 {ar(AWB+4*(i%NWB),4)}, {b} offset:{off}")
    pre = NWB - 1
    for i in range(pre):
        rdb(i)
    for i, (ka, t) in enumerate(seq):
        if t == 0:
            vwait(f"O{ka}")
        issued = min(i + pre, len(seq))
        k(f"s_waitcnt lgkmcnt({issued - i - 1})")
        acc = vr(BACC + 4 * t, 4)
        c = "0" if ka == 0 else acc
        k(f"v_mfma_f32_16x16x32_bf16 {acc}, {ar(AWB+4*(i%NWB),4)}, {vr(OB+4*ka,4)}, {c}")
        if rest and i % 3 == 0:
            issue(rest.pop(0))
        if i + pre < len(seq):
            rdb(i + pre)
    assert not rest
    stamp(k, 29)
    XR, Y, Z, S = 60, 96, 116, 136
    k("s_cmp_eq_u32 s60, 0")
    k("s_cbranch_scc0 M_b_l1")
    for i in range(9):
        k(f"v_accvgpr_read_b32 v{16+i}, a{i}")
    for i in range(9):
        unpack(k, XR + 2 * i, XR + 2 * i + 1, 16 + i)
    k.label("M_yretry")
    k("s_waitcnt vmcnt(0)")
    for t in range(5):
        k(f"v_mfma_f32_16x16x32_bf16 {vr(Y+4*t,4)}, {vr(YA+4*(t//2),4)}, {vr(SEL+4*(t%2),4)}, 0")
    k(f"v_pk_add_f32 v[16:17], {vr(Y,2)}, {vr(Y+2,2)}")
    for i in range(2, 9):
        k(f"v_pk_add_f32 v[16:17], v[16:17], {vr(Y+2*i,2)}")
    k("v_cmp_u_f32 vcc, v16, v17")
    k("s_nop 1")
    k("s_cbranch_vccz M_b_go")
    k("s_add_u32 s78, s78, 1")
    k(f"s_cmp_lt_u32 s78, {SPIN_MAX}")
    k("s_cbranch_scc0 M_b_go")
    k("s_sleep 2")
    for x in yl:
        k(x[0])
    k("s_branch M_yretry")
    k.label("M_b_l1")
    k("s_waitcnt vmcnt(0)")
    for i in range(18):
        k(f"v_accvgpr_read_b32 v{XR+i}, a{i}")
        k(f"v_accvgpr_read_b32 v{Y+i}, a{20+i}")
    k.label("M_b_go")
    k("s_nop 7")
    k(f"v_cmp_u_f32 vcc, v{BACC}, v{BACC}")
    k("s_nop 1")
    k("s_cbranch_vccz M_b_ok")
    k("s_add_u32 s75, s75, 5000")
    k(f"s_cmp_lt_u32 s75, {SPIN_MAX}")
    k("s_cbranch_scc1 M_spin2")
    k.label("M_b_ok")
    stamp(k, 11)
    k("s_cmp_eq_u32 s60, 0")
    k("s_cbranch_scc0 M_nopf1")
    for x in (wloads(0) + wloads(4))[:9]:
        k(x[0])
    k.label("M_nopf1")
    for i in range(9):
        k(f"v_pk_add_f32 {vr(BACC+2*i,2)}, {vr(BACC+2*i,2)}, {vr(XR+2*i,2)}")
    for i in range(9):
        k(f"v_pk_mul_f32 {vr(Z+2*i,2)}, {vr(BACC+2*i,2)}, {vr(Y+2*i,2)}")
    X_, Y_, Z_ = BACC, Y, Z
    sums = [(X_, None), (X_, X_), (Z_, None), (X_, Z_), (Z_, Z_), (Z_, Y_), (Y_, None), (Y_, Y_)]
    for i in range(9):
        for n, (a, b) in enumerate(sums):
            d = vr(S + 2 * n, 2)
            if b is None:
                if i == 1:
                    k(f"v_pk_add_f32 {d}, {vr(a,2)}, {vr(a+2,2)}")
                elif i > 1:
                    k(f"v_pk_add_f32 {d}, {d}, {vr(a+2*i,2)}")
            else:
                if i == 0:
                    k(f"v_pk_mul_f32 {d}, {vr(a,2)}, {vr(b,2)}")
                else:
                    k(f"v_pk_fma_f32 {d}, {vr(a+2*i,2)}, {vr(b+2*i,2)}, {d}")
    for n in range(8):
        k(f"v_add_f32 v{S+2*n}, v{S+2*n}, v{S+2*n+1}")
    for n in range(4):
        red_swap(k, "v_permlane32_swap_b32", S + 2 * n, S + 2 * (n + 4), S + 2 * n + 1)
    red_swap(k, "v_permlane16_swap_b32", S + 1, S + 5, 18)
    red_swap(k, "v_permlane16_swap_b32", S + 3, S + 7, 19)
    k("s_lshl_b32 s13, s17, 11")
    k("s_add_u32 s13, s13, s50")
    k(f"buffer_store_dwordx2 v[18:19], v248, {WS}, s13 offen sc1")
    stamp(k, 12)
    k("s_barrier")
    k("s_cmp_eq_u32 s60, 0")
    k("s_cbranch_scc0 M_nopf2")
    k(f"s_add_u32 s13, s11, {WPOS[4]}")
    k(f"s_add_u32 s14, s11, {WCH[4][0]*7168}")
    k("s_add_u32 s14, s14, s10")
    for x in wloads(4)[2:] + fills_c(20) + wloads(1) + wloads(2):
        k(x[0])
    k.label("M_nopf2")
    k("s_mov_b32 s75, 0")
    G3, T = 152, 136
    k.label("M_spin3")
    k("s_mov_b32 s14, s50")
    for c in range(8):
        k(f"buffer_load_dwordx2 {vr(G3+2*c,2)}, v248, {WS}, s14 offen offset:{(c%2)*2048} sc1")
        if c % 2 == 1 and c < 7:
            k("s_add_u32 s14, s14, 4096")
    k("s_waitcnt vmcnt(0)")
    for c in range(4):
        k(f"v_pk_add_f32 {vr(G3+2*c,2)}, {vr(G3+2*c,2)}, {vr(G3+8+2*c,2)}")
    k(f"v_pk_add_f32 {vr(G3,2)}, {vr(G3,2)}, {vr(G3+2,2)}")
    k(f"v_pk_add_f32 {vr(G3+4,2)}, {vr(G3+4,2)}, {vr(G3+6,2)}")
    k(f"v_pk_add_f32 {vr(G3,2)}, {vr(G3,2)}, {vr(G3+4,2)}")
    k(f"v_cmp_u_f32 vcc, v{G3}, v{G3+1}")
    for h in range(2):
        k(f"v_mov_b32 v{T+h}, v{G3+h}")
        k(f"v_mov_b32 v{T+2+h}, v{G3+h}")
    k("s_cbranch_vccz M_got3")
    spin_tail("s75", "M_spin3", 1)
    k.label("M_got3")
    stamp(k, 13)
    for h in range(2):
        k(f"v_permlane16_swap_b32 v{T+h}, v{T+2+h}")
    for h in range(2):
        k(f"v_mov_b32 v{T+4+h}, v{T+h}")
        k(f"v_mov_b32 v{T+6+h}, v{T+2+h}")
    for h in range(2):
        k(f"v_permlane32_swap_b32 v{T+h}, v{T+4+h}")
        k(f"v_permlane32_swap_b32 v{T+2+h}, v{T+6+h}")
    INV = "0x3ae38e39"
    k(f"v_mul_f32 v16, {INV}, v{T}")
    k(f"v_mul_f32 v17, {INV}, v{T+1}")
    k("v_fma_f32 v17, -v16, v16, v17")
    k("v_max_f32 v17, 0, v17")
    k("v_add_f32 v17, 0x3727c5ac, v17")
    k("v_rsq_f32 v18, v17")
    k("v_mul_f32 v20, v18, v16")
    k("v_xor_b32 v20, 0x80000000, v20")
    for i in range(9):
        x = vr(BACC + 2 * i, 2)
        k(f"v_pk_fma_f32 {x}, {vr(Z+2*i,2)}, v[18:19], {x} op_sel_hi:[1,0,1]")
    for i in range(9):
        x = vr(BACC + 2 * i, 2)
        k(f"v_pk_fma_f32 {x}, {vr(Y+2*i,2)}, v[20:21], {x} op_sel_hi:[1,0,1]")
    k("s_cmp_eq_u32 s60, 0")
    k("s_cbranch_scc0 M_final")
    k(f"v_fma_f32 v22, v18, v{T+2}, v{T}")
    k(f"v_fma_f32 v22, v20, v{T+6}, v22")
    k(f"v_mul_f32 v24, v18, v{T+4}")
    k(f"v_fma_f32 v24, 2.0, v{T+3}, v24")
    k(f"v_mul_f32 v25, v20, v{T+5}")
    k("v_fma_f32 v24, 2.0, v25, v24")
    k(f"v_fma_f32 v23, v18, v24, v{T+1}")
    k(f"v_mul_f32 v25, v20, v{T+7}")
    k(f"v_fma_f32 v25, 2.0, v{T+2}, v25")
    k("v_fma_f32 v23, v20, v25, v23")
    k(f"v_mul_f32 v22, {INV}, v22")
    k(f"v_mul_f32 v23, {INV}, v23")
    k("v_fma_f32 v23, -v22, v22, v23")
    k("v_max_f32 v23, 0, v23")
    k("v_add_f32 v23, 0x3727c5ac, v23")
    k("v_rsq_f32 v24, v23")
    k("v_mul_f32 v26, v24, v22")
    k("v_xor_b32 v26, 0x80000000, v26")
    for i in range(9):
        k(f"v_pk_fma_f32 {vr(Z+2*i,2)}, {vr(BACC+2*i,2)}, v[24:25], v[26:27] op_sel_hi:[1,0,0]")
    for i in range(9):
        k(f"v_cvt_pk_bf16_f32 v{28+i}, v{Z+2*i}, v{Z+2*i+1}")
    k(f"buffer_store_dwordx4 v[28:31], v244, {WS}, s71 offen sc1")
    k(f"buffer_store_dwordx4 v[32:35], v244, {WS}, s71 offen offset:256 sc1")
    k(f"buffer_store_dword v36, v245, {WS}, s72 offen sc1")
    for x in wloads(3):
        k(x[0])
    for i in range(18):
        k(f"v_accvgpr_write_b32 a{i}, v{BACC+i}")
        k(f"v_accvgpr_write_b32 a{20+i}, v{Y+i}")
    stamp(k, 14)
    if DIAG:
        k("s_mov_b32 s96, 32")
    k("s_mov_b32 s60, 1")
    k(f"s_mov_b32 s59, {L_DELTA:#x}")
    k(f"s_add_u32 s58, s9, {WS_XF2:#x}")
    k(f"s_add_u32 s50, s50, {WS_ST2-WS_ST1:#x}")
    k("s_mov_b32 s75, 0")
    k("s_waitcnt vmcnt(0)")
    k("s_barrier")
    k.label("M_xretry")
    k("s_mov_b32 s78, 0")
    k("s_add_u32 s15, s58, 16384")
    k.label("M_spin4")
    k(f"buffer_load_dword v16, v250, {WS}, s15 offen sc1")
    k("s_waitcnt vmcnt(0)")
    k("v_cmp_eq_u32 vcc, -1, v16")
    k("s_nop 1")
    k("s_cbranch_vccz M_got4")
    spin_tail("s78", "M_spin4", 2)
    k.label("M_got4")
    stamp(k, 0)
    k("s_branch M_gemm1")

    k.label("M_final")
    for i in range(9):
        k(f"v_cvt_pk_bf16_f32 v{28+i}, v{BACC+2*i}, v{BACC+2*i+1}")
    k("buffer_store_dwordx4 v[28:31], v243, s[32:35], s48 offen")
    k("buffer_store_dwordx4 v[32:35], v243, s[32:35], s48 offen offset:16")
    k("buffer_store_dword v36, v243, s[32:35], s48 offen offset:32")
    if DIAG:
        k("s_waitcnt vmcnt(0)")
        stamp(k, 14)
        stamp_flush(k)
    k.label("M_end")
    k("s_endpgm")
    return k, 256, 163840


def main(out):
    ks = [gen_k0(), gen_main()]
    hdr = open("cdna_kernels/%s.s.ref" % NAME).read().split("\n")
    lines = [l for l in hdr if l.startswith(";") and "@launch" not in l and "Override" not in l and "grid=ceil" not in l]
    lines = lines[:14]
    for k, nwg, lds in ks:
        lines.append(f"; @launch kernel={k.name} grid=({nwg},1,1) block=(256,1,1) lds={lds}")
    lines.append('.amdgcn_target "amdgcn-amd-amdhsa--gfx950"')
    lines.append(".text")
    kds = []
    for k, nwg, lds in ks:
        code, kd, nv = k.text()
        print(k.name, "grid", nwg, "vgprs", nv, "sgprs", k.maxs, "lines", code.count("\n"), "lds", lds)
        lines.append(code)
        kds.append(kd)
    lines.append('.section .rodata,"a"')
    for kd in kds:
        lines.append(".p2align 6")
        lines.append(kd)
    open(out, "w").write("\n".join(lines))


if __name__ == "__main__":
    if len(sys.argv) > 2 and sys.argv[2] == "diag":
        DIAG = True
    main(sys.argv[1] if len(sys.argv) > 1 else "cdna_kernels/%s.s" % NAME)
```

```python
import sys
from asmlib import Kernel, vr, sr, ar

NAME = "interleave_layers__linear_kernel_hedgehog__ssm_conv_h3__prompt"
NB_X = 2048 * 576 * 2
WS_WF, SZ_WF = 0x0, 16 * 129024
WS_WOF, SZ_WOF = 0x200000, 8 * 92160
WS_UT = 0x300000
WS_XF0 = 0x600000
WS_KVP1 = 0x900000
KVB = 3072
WS_OF1 = WS_KVP1 + 256 * KVB
WS_FILL_END = WS_OF1 + NB_X
WS_KVP2 = 0xD00000
WS_OF2 = WS_KVP2 + 256 * KVB
L_DELTA = WS_KVP2 - WS_KVP1
WS_XF2 = 0x1100000
WS_YT = 0x1400000
WS_ST1 = 0x1700000
WS_ST2 = WS_ST1 + 0x80000
WS_END = 0x1800000
WS_DIAG = 0x2000000
BIG = 0x7FFFFF00
LOG2E = 0x3FB8AA3B
SPIN_MAX = 20000
DIAG = False


def stamp(k, i):
    if DIAG:
        k("s_memrealtime s[98:99]")
        k(f"s_add_u32 m0, s96, {i}")
        k("s_waitcnt lgkmcnt(0)")
        k("v_writelane_b32 v255, s98, m0")


def cstamp(k, i):
    if DIAG:
        k("s_memtime s[98:99]")
        k(f"s_add_u32 m0, s96, {i}")
        k("s_waitcnt lgkmcnt(0)")
        k("v_writelane_b32 v255, s98, m0")


def stamp_init(k, kidx):
    if DIAG:
        srd(k, 92, 22, WS_DIAG, 0x400000)
        k("s_lshl_b32 s97, s2, 2")
        k("s_add_u32 s97, s97, s3")
        k(f"s_add_u32 s97, s97, {kidx*2048}")
        k("s_lshl_b32 s97, s97, 8")
        k("s_mov_b32 s96, 0")
        k("v_mov_b32 v255, 0")
        k("v_lshlrev_b32 v254, 2, v1")


def stamp_flush(k):
    if DIAG:
        k("buffer_store_dword v255, v254, s[92:95], s97 offen")


def srd(k, s, pbase, off, size):
    if off:
        k(f"s_add_u32 s{s}, s{pbase}, {off:#x}")
        k(f"s_addc_u32 s{s+1}, s{pbase+1}, 0")
    else:
        k(f"s_mov_b32 s{s}, s{pbase}")
        k(f"s_mov_b32 s{s+1}, s{pbase+1}")
    k(f"s_mov_b32 s{s+2}, {size:#x}")
    k(f"s_mov_b32 s{s+3}, 0x20000")


def unpack(k, dlo, dhi, src):
    k(f"v_lshlrev_b32 v{dlo}, 16, v{src}")
    k(f"v_and_b32 v{dhi}, 0xffff0000, v{src}")


def red_swap(k, op, a, b, dst):
    k(f"{op} v{a}, v{b}")
    k(f"v_add_f32 v{dst}, v{a}, v{b}")


def pl_rows(k, lo0, lo1, hi0, hi1, vi, t0, t1):
    k(f"v_lshrrev_b32 v{t0}, 3, v{vi}")
    k(f"v_mul_u32_u24 v{t0}, 18, v{t0}")
    k(f"v_bfe_u32 v{t1}, v{vi}, 2, 1")
    k(f"v_lshl_add_u32 v{t0}, v{t1}, 3, v{t0}")
    k(f"v_and_b32 v{t1}, 3, v{vi}")
    k(f"v_add_u32 v{lo0}, v{t0}, v{t1}")
    k(f"v_add_u32 v{lo1}, 4, v{lo0}")
    k(f"v_and_b32 v{t0}, 12, v{vi}")
    k(f"v_bfe_u32 v{t1}, v{vi}, 1, 1")
    k(f"v_add_u32 v{t0}, v{t0}, v{t1}")
    k(f"v_mul_u32_u24 v{t0}, 18, v{t0}")
    k(f"v_and_b32 v{t1}, 1, v{vi}")
    k(f"v_add_u32 v{t0}, v{t0}, v{t1}")
    k(f"v_add_u32 v{hi0}, 16, v{t0}")
    k(f"v_add_u32 v{hi1}, 36, v{hi0}")


def sel_frags(k, z0, vi, vq, t0, t1):
    for i in (0, 1, 4, 5):
        k(f"v_mov_b32 v{z0+i}, 0")
    k(f"v_and_b32 v{t0}, 1, v{vi}")
    k(f"v_lshlrev_b32 v{t0}, 4, v{t0}")
    k(f"v_mov_b32 v{t1}, 0x3f80")
    k(f"v_lshlrev_b32 v{t1}, v{t0}, v{t1}")
    k(f"v_lshrrev_b32 v{t0}, 2, v{vi}")
    k(f"v_cmp_eq_u32 vcc, v{t0}, v{vq}")
    k(f"v_cndmask_b32 v{t1}, 0, v{t1}, vcc")
    k(f"v_and_b32 v{t0}, 2, v{vi}")
    k(f"v_cmp_eq_u32 vcc, 0, v{t0}")
    k(f"v_cndmask_b32 v{z0+2}, 0, v{t1}, vcc")
    k(f"v_cndmask_b32 v{z0+3}, v{t1}, v{z0}, vcc")


def gen_k0():
    k = Kernel("prep_kernel")
    T4_END, T1_END, T3_END, T2_END = 64, 136, 280, 316
    nfill = (WS_FILL_END - WS_KVP1) // 1024
    NFW = (nfill + 63) // 64
    NWG = T2_END + NFW

    def fin():
        if DIAG:
            k("s_waitcnt vmcnt(0)")
            stamp(k, 1)
            stamp_flush(k)
        k("s_endpgm")
    k(f"s_cmp_ge_u32 s2, {NWG}")
    k("s_cbranch_scc1 K0_end")
    k("s_load_dwordx8 s[8:15], s[0:1], 0")
    k("s_load_dwordx4 s[16:19], s[0:1], 40")
    k("s_load_dwordx2 s[20:21], s[0:1], 56")
    k("s_load_dwordx2 s[22:23], s[0:1], 96")
    k("v_lshrrev_b32 v2, 6, v0")
    k("v_and_b32 v1, 63, v0")
    k("v_readfirstlane_b32 s3, v2")
    k("s_lshl_b32 s4, s2, 2")
    k("s_add_u32 s4, s4, s3")
    k("s_movk_i32 s40, 0x1000")
    k("s_movk_i32 s41, 0x2000")
    k("s_movk_i32 s42, 0x3000")
    k("s_movk_i32 s43, 0x4000")
    k("s_waitcnt lgkmcnt(0)")
    stamp_init(k, 0)
    stamp(k, 0)
    k(f"s_cmp_lt_u32 s2, {T4_END}")
    k("s_cbranch_scc1 K0_T4")
    k(f"s_cmp_lt_u32 s2, {T1_END}")
    k("s_cbranch_scc1 K0_T1")
    k(f"s_cmp_lt_u32 s2, {T3_END}")
    k("s_cbranch_scc1 K0_T3")
    k(f"s_cmp_lt_u32 s2, {T2_END}")
    k("s_cbranch_scc1 K0_T2")
    srd(k, 24, 22, WS_KVP1, WS_FILL_END - WS_KVP1)
    k(f"s_sub_u32 s5, s4, {T2_END*4}")
    k("s_lshl_b32 s5, s5, 14")
    k("v_lshlrev_b32 v2, 4, v1")
    k("v_add_u32 v2, s5, v2")
    for i in range(4):
        k(f"v_mov_b32 v{4+i}, -1")
    so = ["0", "s40", "s41", "s42"]
    for n in range(16):
        k(f"buffer_store_dwordx4 v[4:7], v2, s[24:27], {so[n//4]} offen offset:{(n%4)*1024}")
    fin()

    k.label("K0_T4")
    srd(k, 24, 8, 0, NB_X)
    srd(k, 28, 22, WS_XF0, NB_X)
    k("v_and_b32 v2, 7, v1")
    k("v_lshrrev_b32 v3, 3, v1")
    k("s_lshl_b32 s5, s4, 3")
    k("v_add_u32 v4, s5, v2")
    k("v_mul_u32_u24 v4, 1152, v4")
    k("v_mul_u32_u24 v6, 144, v3")
    k("v_add_u32 v6, v6, v4")
    k("v_lshrrev_b32 v7, 1, v3")
    k("v_mul_u32_u24 v7, 36, v7")
    k("v_add_u32 v4, v4, v7")
    k("v_and_b32 v7, 1, v3")
    k("v_lshl_add_u32 v4, v7, 4, v4")
    RAW, XV = 8, 44
    for m in range(8):
        k(f"buffer_load_dwordx4 {vr(RAW+4*m,4)}, v4, s[24:27], 0 offen offset:{144*m}")
    for n in range(4):
        k(f"buffer_load_dword v{RAW+32+n}, v6, s[24:27], 0 offen offset:{36*n+32}")
    k("s_lshr_b32 s6, s4, 1")
    k("s_mul_i32 s6, s6, 18432")
    k("s_and_b32 s7, s4, 1")
    k("s_lshl_b32 s7, s7, 7")
    k("s_add_u32 s6, s6, s7")
    k("v_lshlrev_b32 v5, 8, v3")
    k("v_lshl_add_u32 v5, v2, 4, v5")
    k("v_add_u32 v5, s6, v5")
    for m in range(9):
        k(f"s_waitcnt vmcnt({max(0, 11-m) if m < 8 else 0})")
        for j in range(4):
            unpack(k, XV + 8 * m + 2 * j, XV + 8 * m + 2 * j + 1, RAW + 4 * m + j)
    S = 116
    for i in range(4):
        k(f"v_pk_add_f32 {vr(S+2*i,2)}, {vr(XV+2*i,2)}, {vr(XV+8+2*i,2)}")
    for m in range(2, 9):
        for i in range(4):
            k(f"v_pk_add_f32 {vr(S+2*i,2)}, {vr(S+2*i,2)}, {vr(XV+8*m+2*i,2)}")

    def full_reduce(dst):
        k(f"v_pk_add_f32 {vr(S,2)}, {vr(S,2)}, {vr(S+2,2)}")
        k(f"v_pk_add_f32 {vr(S+4,2)}, {vr(S+4,2)}, {vr(S+6,2)}")
        k(f"v_pk_add_f32 {vr(S,2)}, {vr(S,2)}, {vr(S+4,2)}")
        k(f"v_add_f32 v{S}, v{S}, v{S+1}")
        k(f"v_add_f32_dpp v{S+1}, v{S}, v{S} row_ror:8 row_mask:0xf bank_mask:0xf")
        k(f"v_mov_b32 v{S+2}, v{S+1}")
        red_swap(k, "v_permlane16_swap_b32", S + 1, S + 2, S + 3)
        k(f"v_mov_b32 v{S+4}, v{S+3}")
        red_swap(k, "v_permlane32_swap_b32", S + 3, S + 4, dst)
    full_reduce(124)
    k("v_mul_f32 v124, 0xbae38e39, v124")
    for i in range(36):
        k(f"v_pk_add_f32 {vr(XV+2*i,2)}, {vr(XV+2*i,2)}, v[124:125] op_sel_hi:[1,0]")
    for i in range(4):
        k(f"v_pk_mul_f32 {vr(S+2*i,2)}, {vr(XV+2*i,2)}, {vr(XV+2*i,2)}")
    for m in range(1, 9):
        for i in range(4):
            x = vr(XV + 8 * m + 2 * i, 2)
            k(f"v_pk_fma_f32 {vr(S+2*i,2)}, {x}, {x}, {vr(S+2*i,2)}")
    full_reduce(126)
    k("v_mov_b32 v127, 0x3727c5ac")
    k("v_fmac_f32 v127, 0x3ae38e39, v126")
    k("v_rsq_f32 v126, v127")
    for i in range(36):
        k(f"v_pk_mul_f32 {vr(XV+2*i,2)}, {vr(XV+2*i,2)}, v[126:127] op_sel_hi:[1,0]")
    so = ["0", "s40", "s41", "s42", "s43"]
    for m in range(9):
        for j in range(4):
            k(f"v_cvt_pk_bf16_f32 v{RAW+4*m+j}, v{XV+8*m+2*j}, v{XV+8*m+2*j+1}")
        k(f"buffer_store_dwordx4 {vr(RAW+4*m,4)}, v5, s[28:31], {so[m//2]} offen offset:{(m%2)*2048}")
    fin()

    k.label("K0_T1")
    srd(k, 24, 10, 0, 576 * 1728 * 2)
    srd(k, 28, 12, 0, 32 * 648)
    srd(k, 32, 22, WS_WF, SZ_WF)
    k(f"s_sub_u32 s5, s4, {T4_END*4}")
    k("s_mul_i32 s6, s5, 171")
    k("s_lshr_b32 s6, s6, 9")
    k("s_mul_i32 s7, s6, 3")
    k("s_sub_u32 s49, s5, s7")
    k("s_mul_i32 s7, s49, 6")
    k("s_lshr_b32 s36, s6, 5")
    k("s_and_b32 s37, s6, 31")
    k("v_and_b32 v2, 15, v1")
    k("v_lshrrev_b32 v3, 4, v1")
    PB, G = 64, 72
    k("v_mul_u32_u24 v6, 288, v3")
    k("v_lshl_add_u32 v6, v2, 1, v6")
    k(f"v_mov_b32 v12, {BIG:#x}")
    k("v_cmp_gt_u32 vcc, 3, v3")
    k("v_cndmask_b32 v7, v12, v6, vcc")
    k("v_cmp_gt_u32 vcc, 2, v3")
    k("v_cndmask_b32 v8, v12, v6, vcc")
    k("v_cmp_gt_u32 vcc, 2, v2")
    k("v_cndmask_b32 v9, v12, v7, vcc")
    k("v_cndmask_b32 v10, v12, v8, vcc")
    k("s_mul_i32 s39, s37, 648")
    for ft in range(2):
        for jj in range(8):
            a = (7 if jj < 2 else 8) + 2 * ft
            k(f"buffer_load_ushort v{G+8*ft+jj}, v{a}, s[28:31], s39 offen offset:{36*jj+32*ft}")
    pl_rows(k, 4, 5, 6, 7, 2, 8, 9)
    for r in (4, 5, 6, 7):
        k(f"v_mul_u32_u24 v{r}, 3456, v{r}")
        k(f"v_lshl_add_u32 v{r}, v3, 4, v{r}")
    k("s_cmp_eq_u32 s49, 2")
    k("s_cselect_b64 vcc, -1, 0")
    k("v_cndmask_b32 v6, v4, v6, vcc")
    k("v_cndmask_b32 v7, v5, v7, vcc")
    k("s_mul_i32 s39, s36, 1152")
    k("s_mul_i32 s50, s37, 36")
    k("s_add_u32 s39, s39, s50")
    k(f"s_mul_i32 s38, s7, {36*3456}")
    k("s_add_u32 s38, s38, s39")
    AW = 16
    for q in range(6):
        if q == 4:
            k("s_cmp_eq_u32 s49, 2")
            k("s_cselect_b32 s38, s39, s38")
            k(f"s_mov_b32 s51, {36*3456}")
            k(f"s_cselect_b32 s51, {288*3456}, s51")
        a0, a1 = (4, 5) if q < 4 else (6, 7)
        k(f"buffer_load_dwordx4 {vr(AW+8*q,4)}, v{a0}, s[24:27], s38 offen")
        k(f"buffer_load_dwordx4 {vr(AW+8*q+4,4)}, v{a1}, s[24:27], s38 offen")
        if q < 4:
            k(f"s_add_u32 s38, s38, {36*3456}")
        elif q == 4:
            k("s_add_u32 s38, s38, s51")
    k("s_cmp_eq_u32 s36, 2")
    k("s_cselect_b32 s44, 1, 0")
    k("s_cmp_eq_u32 s36, 1")
    k("s_cselect_b32 s45, 1, 0")
    k("s_and_b32 s46, s37, 1")
    k("s_lshl_b32 s46, s46, 1")
    k("s_add_u32 s45, s45, s46")
    k("s_mul_i32 s46, s44, 18")
    for ft in range(2):
        d = 13 + ft
        k(f"v_add_u32 v6, {16*ft}, v2")
        k("v_cmp_lt_u32 vcc, 8, v6")
        k("v_mov_b32 v7, s44")
        k("v_cndmask_b32 v7, 0, v7, vcc")
        k("v_add_u32 v8, s45, v7")
        k("v_mul_u32_u24 v9, 9, v7")
        k("v_add_u32 v6, s46, v6")
        k("v_sub_u32 v6, v6, v9")
        k("v_lshrrev_b32 v9, 2, v6")
        k("v_and_b32 v6, 3, v6")
        k("v_lshl_add_u32 v6, v8, 2, v6")
        k("v_lshl_add_u32 v6, v3, 4, v6")
        k("v_lshlrev_b32 v6, 4, v6")
        k(f"v_lshl_add_u32 v{d}, v9, 10, v6")
    k("v_cmp_gt_u32 vcc, 2, v2")
    k("v_cndmask_b32 v14, v12, v14, vcc")
    k("s_lshr_b32 s47, s37, 1")
    k("s_mul_i32 s47, s47, 129024")
    k("s_mul_i32 s48, s7, 7168")
    k("s_add_u32 s47, s47, s48")
    k("s_cmp_eq_u32 s36, 2")
    k("s_cbranch_scc1 K0_T1_ident")
    k("s_waitcnt vmcnt(12)")
    for i in range(8):
        k(f"v_lshl_or_b32 v{PB+i}, v{G+2*i+1}, 16, v{G+2*i}")
    k("s_branch K0_T1_go")
    k.label("K0_T1_ident")
    k("v_lshlrev_b32 v6, 3, v3")
    k("v_sub_u32 v6, v2, v6")
    k("v_mov_b32 v7, 0x3f80")
    k("v_mov_b32 v8, 0x3f800000")
    for ft in range(2):
        for m in range(4):
            d = PB + 4 * ft + m
            k(f"v_cmp_eq_i32 vcc, {2*m-16*ft}, v6")
            k(f"v_cndmask_b32 v{d}, 0, v7, vcc")
            k(f"v_cmp_eq_i32 vcc, {2*m+1-16*ft}, v6")
            k(f"v_cndmask_b32 v{d}, v{d}, v8, vcc")
    k.label("K0_T1_go")
    k("s_nop 4")
    DD = 88
    for q in range(6):
        k(f"s_waitcnt vmcnt({10-2*q})")
        for ft in range(2):
            for a in range(2):
                k(f"v_mfma_f32_16x16x32_bf16 {vr(DD+16*q+8*ft+4*a,4)}, {vr(AW+8*q+4*a,4)}, {vr(PB+4*ft,4)}, 0")
    for q in range(6):
        for ft in range(2):
            o = AW + 8 * q + 4 * ft
            for j in range(4):
                b = DD + 16 * q + 8 * ft + 2 * j
                k(f"v_cvt_pk_bf16_f32 v{o+j}, v{b}, v{b+1}")
            k(f"buffer_store_dwordx4 {vr(o,4)}, v{13+ft}, s[32:35], s47 offen")
        if q < 5:
            k("s_add_u32 s47, s47, 7168")
    fin()

    k.label("K0_T3")
    srd(k, 24, 16, 0, NB_X)
    srd(k, 28, 18, 0, NB_X)
    srd(k, 32, 20, 0, 576 * 8)
    srd(k, 36, 22, WS_UT, NB_X)
    k(f"s_sub_u32 s5, s4, {T1_END*4}")
    k("s_lshr_b32 s6, s5, 6")
    k("s_and_b32 s7, s5, 63")
    k("v_and_b32 v2, 15, v1")
    k("v_lshrrev_b32 v3, 4, v1")
    k("s_lshl_b32 s44, s7, 5")
    k("v_lshlrev_b32 v4, 3, v3")
    k("v_add_u32 v4, s44, v4")
    k("v_mul_u32_u24 v5, 1152, v4")
    k("s_lshl_b32 s45, s6, 7")
    k("v_lshl_add_u32 v5, v2, 3, v5")
    k("v_add_u32 v5, s45, v5")
    k("v_add_u32 v6, 4608, v5")
    k("v_subrev_u32 v7, 3456, v5")
    k("v_subrev_u32 v8, 2304, v5")
    k("v_subrev_u32 v9, 1152, v5")
    KR, VR, WR = 16, 38, 56
    for n in range(3):
        k(f"buffer_load_dwordx2 {vr(KR+2*n,2)}, v{7+n}, s[24:27], 0 offen")
    for n in range(8):
        k(f"buffer_load_dwordx2 {vr(KR+6+2*n,2)}, v{5+n//4}, s[24:27], 0 offen offset:{(n%4)*1152}")
    k("s_lshl_b32 s46, s6, 9")
    k("v_lshlrev_b32 v10, 5, v2")
    k(f"buffer_load_dwordx4 {vr(WR,4)}, v10, s[32:35], s46 offen")
    k(f"buffer_load_dwordx4 {vr(WR+4,4)}, v10, s[32:35], s46 offen offset:16")
    for n in range(8):
        k(f"buffer_load_dwordx2 {vr(VR+2*n,2)}, v{5+n//4}, s[28:31], 0 offen offset:{(n%4)*1152}")
    k("s_lshl_b32 s47, s6, 18")
    k("v_lshlrev_b32 v11, 14, v2")
    k("v_add_u32 v11, s47, v11")
    k("v_lshlrev_b32 v12, 1, v4")
    k("v_sub_u32 v11, v11, v12")
    k("v_add_u32 v11, 4080, v11")
    KF, WF_, VF, U = 64, 108, 124, 156
    k("s_waitcnt vmcnt(10)")
    for n in range(11):
        for j in range(2):
            unpack(k, KF + 4 * n + 2 * j, KF + 4 * n + 2 * j + 1, KR + 2 * n + j)
    k("s_waitcnt vmcnt(8)")
    for c in range(4):
        unpack(k, WF_ + 0 + c, WF_ + 4 + c, WR + 2 * c)
        unpack(k, WF_ + 8 + c, WF_ + 12 + c, WR + 2 * c + 1)
    for rho in range(8):
        for p in range(2):
            d = vr(U + 4 * rho + 2 * p, 2)
            for tau in range(4):
                kk = vr(KF + 4 * (rho + 3 - tau) + 2 * p, 2)
                w = vr(WF_ + 4 * tau + 2 * p, 2)
                if tau == 0:
                    k(f"v_pk_mul_f32 {d}, {kk}, {w}")
                else:
                    k(f"v_pk_fma_f32 {d}, {kk}, {w}, {d}")
    k("s_waitcnt vmcnt(0)")
    for n in range(8):
        for j in range(2):
            unpack(k, VF + 4 * n + 2 * j, VF + 4 * n + 2 * j + 1, VR + 2 * n + j)
    for i in range(16):
        k(f"v_pk_mul_f32 {vr(U+2*i,2)}, {vr(U+2*i,2)}, {vr(VF+2*i,2)}")
    so = ["0", "s40", "s41", "s42"]
    for c in range(4):
        o = KR + 4 * c
        for m in range(4):
            k(f"v_cvt_pk_bf16_f32 v{o+m}, v{U+4*(7-2*m)+c}, v{U+4*(6-2*m)+c}")
        k(f"buffer_store_dwordx4 {vr(o,4)}, v11, s[36:39], {so[c]} offen")
    fin()

    k.label("K0_T2")
    srd(k, 24, 14, 0, 576 * 576 * 2)
    srd(k, 28, 22, WS_WOF, SZ_WOF)
    k(f"s_sub_u32 s5, s4, {T3_END*4}")
    k("s_lshr_b32 s6, s5, 3")
    k("s_and_b32 s7, s5, 7")
    k("v_and_b32 v2, 15, v1")
    k("v_lshrrev_b32 v3, 4, v1")
    pl_rows(k, 4, 5, 6, 7, 2, 8, 9)
    k("s_cmp_ge_u32 s6, 16")
    k("s_cselect_b64 vcc, -1, 0")
    k("v_cndmask_b32 v4, v4, v6, vcc")
    k("v_cndmask_b32 v5, v5, v7, vcc")
    k("s_mul_i32 s36, s6, 36")
    k("s_sub_u32 s37, s6, 16")
    k("s_mul_i32 s37, s37, 288")
    k("s_cmp_ge_u32 s6, 16")
    k("s_cselect_b32 s36, s37, s36")
    k("s_mul_i32 s36, s36, 1152")
    k("s_mul_i32 s37, s7, 144")
    k("s_add_u32 s37, s37, s36")
    k("v_mul_u32_u24 v6, 36, v3")
    k("v_mul_u32_u24 v4, 1152, v4")
    k("v_mul_u32_u24 v5, 1152, v5")
    k("v_add_u32 v4, v4, v6")
    k("v_add_u32 v5, v5, v6")
    AW = 16
    for m in range(3):
        for a in range(2):
            k(f"buffer_load_dwordx4 {vr(AW+8*m+4*a,4)}, v{4+a}, s[24:27], s37 offen offset:{16*m}")
    sel_frags(k, 8, 2, 3, 6, 7)
    k("s_mul_i32 s38, s7, 92160")
    k("s_mul_i32 s39, s6, 5120")
    k("s_add_u32 s38, s38, s39")
    k("s_add_u32 s39, s38, 0x1000")
    k("v_lshlrev_b32 v14, 4, v1")
    k("s_waitcnt vmcnt(0)")
    DD = 48
    for t in range(5):
        m, b = t // 2, t % 2
        for a in range(2):
            sel = "v[10:13]" if b == 0 else "v[8:11]"
            k(f"v_mfma_f32_16x16x32_bf16 {vr(DD+8*t+4*a,4)}, {vr(AW+8*m+4*a,4)}, {sel}, 0")
    for t in range(5):
        o = AW + 4 * t
        for j in range(4):
            bb = DD + 8 * t + 2 * j
            k(f"v_cvt_pk_bf16_f32 v{o+j}, v{bb}, v{bb+1}")
        k(f"buffer_store_dwordx4 {vr(o,4)}, v14, s[28:31], {'s38' if t < 4 else 's39'} offen offset:{(t%4)*1024}")
    fin()
    k.label("K0_end")
    k("s_endpgm")
    return k, NWG, 0


TB_PITCH = 232
L_KVST, L_KVS, L_ZERO, L_DUMMY, L_TB = 0, 3328, 6656, 6784, 8192
WCH = [(0, 4), (4, 4), (8, 2), (10, 4), (14, 4)]
WPOS = [0, 28672, 57344, 71680, 100352]
WO_SEG = [(0, 34, 129024), (34, 32, 38912), (66, 24, 71680)]
CONV_L = [102400, L_TB]
H0_OFF, H1_OFF, U0_OFF, U1_OFF = 0, 4224, 8448, 13024
AWB, NWB = 72, 10


def wo_lds(f):
    for f0, n, base in WO_SEG:
        if f0 <= f < f0 + n:
            return base + (f - f0) * 1024
    raise ValueError


def w_lds(ka, t):
    for ci, (k0, n) in enumerate(WCH):
        if k0 <= ka < k0 + n:
            return WPOS[ci] + ((ka - k0) * 7 + t) * 1024, ci
    raise ValueError


def gen_main():
    k = Kernel("main_kernel")
    k.vm = []
    WS = "s[24:27]"
    XB = lambda ka, rtl: 96 + (2 * (17 - ka) + rtl) * 4
    ACC = 40
    st = {"done": 0}

    def vreset():
        k.vm = []
        st["done"] = 0

    def issue(item):
        text, tag = item
        k(text)
        k.vm.append(tag)

    def vwait(tag):
        idx = max(i for i, t in enumerate(k.vm) if t == tag)
        if idx + 1 > st["done"]:
            k(f"s_waitcnt vmcnt({len(k.vm) - idx - 1})")
            st["done"] = idx + 1

    def vwait0(extra=""):
        k("s_waitcnt vmcnt(0)" + extra)
        vreset()

    def lds_ref(a):
        if a < 65536:
            return "v2", a
        if a < 131072:
            return "v5", a - 65536
        return "v12", a - 131072

    def spin_tail(cnt, label, sleep=1):
        k(f"s_add_u32 {cnt}, {cnt}, 1")
        k(f"s_cmp_lt_u32 {cnt}, {SPIN_MAX}")
        if sleep:
            k(f"s_sleep {sleep}")
        k(f"s_cbranch_scc1 {label}")

    k("s_cmp_ge_u32 s2, 256")
    k("s_cbranch_scc1 M_end")
    k("s_load_dwordx2 s[22:23], s[0:1], 96")
    k("s_load_dwordx2 s[20:21], s[0:1], 0")
    k("s_load_dwordx4 s[52:55], s[0:1], 64")
    k("s_load_dwordx2 s[56:57], s[0:1], 80")
    k("v_lshrrev_b32 v2, 6, v0")
    k("v_and_b32 v1, 63, v0")
    k("v_readfirstlane_b32 s3, v2")
    k("s_and_b32 s4, s2, 7")
    k("s_lshr_b32 s5, s2, 3")
    k("s_lshr_b32 s6, s4, 1")
    k("s_lshl_b32 s6, s6, 2")
    k("s_and_b32 s7, s5, 3")
    k("s_add_u32 s6, s6, s7")
    k("s_and_b32 s7, s4, 1")
    k("s_lshl_b32 s7, s7, 3")
    k("s_lshr_b32 s8, s5, 2")
    k("s_add_u32 s7, s7, s8")
    k("v_lshlrev_b32 v2, 4, v1")
    k("s_lshl_b32 s8, s6, 3")
    k("s_lshl_b32 s9, s3, 1")
    k("s_add_u32 s8, s8, s9")
    k("s_getpc_b64 s[86:87]")
    k.label("M_pc")
    k("s_lshl_b32 s88, s5, 2")
    k("s_add_u32 s88, s88, s3")
    k("s_and_b32 s88, s88, 63")
    k("s_lshl_b32 s88, s88, 10")
    k("s_min_u32 s88, s88, M_end - M_pc - 1024")
    k("v_add_u32 v3, s88, v2")
    issue(("global_load_dwordx4 a[112:115], v3, s[86:87]", "PF"))
    k("s_mul_i32 s9, s8, 18432")
    k("s_mul_i32 s10, s7, 129024")
    k("s_mul_i32 s11, s3, 7168")
    k(f"s_add_u32 s58, s9, {WS_XF0:#x}")
    k("s_mov_b32 s59, 0")
    k("s_mov_b32 s60, 0")
    k("s_waitcnt lgkmcnt(0)")
    srd(k, 24, 22, 0, WS_END)
    stamp_init(k, 1)
    stamp(k, 0)

    def xloads(ka, flags=""):
        return [(f"s_add_u32 s12, s58, {rtl*18432+ka*1024}\nbuffer_load_dwordx4 {vr(XB(ka,rtl),4)}, v2, {WS}, s12 offen {flags}", f"X{ka}")
                for rtl in range(2)]

    def dma_group(pre, cnt, tag):
        out = []
        for i in range(cnt):
            if i and i % 4 == 0:
                pre = "s_add_u32 s13, s13, 4096\ns_add_u32 s14, s14, 4096\n"
            out.append((pre + f"s_mov_b32 m0, s13\nbuffer_load_dwordx4 v2, {WS}, s14 offen offset:{(i%4)*1024} lds", tag))
            pre = ""
        return out

    def wloads(ci):
        k0, n = WCH[ci]
        if n == 4:
            pre = f"s_add_u32 s13, s11, {WPOS[ci]}\ns_add_u32 s14, s11, {k0*7168}\n"
            cnt = 7
        else:
            pre = f"s_lshl_b32 s13, s3, 12\ns_min_u32 s13, s13, 10240\ns_add_u32 s14, s13, {k0*7168}\ns_add_u32 s13, s13, {WPOS[ci]}\n"
            cnt = 4
        return dma_group(pre + "s_add_u32 s14, s14, s10\n", cnt, f"W{ci}")

    def woloads(seg):
        f0, n, base = WO_SEG[seg]
        per = (n + 3) // 4
        pre = f"s_mul_i32 s13, s3, {per*1024}\ns_min_u32 s13, s13, {(n-per)*1024}\ns_add_u32 s14, s13, s61\n"
        if f0:
            pre += f"s_add_u32 s14, s14, {f0*1024}\n"
        pre += f"s_add_u32 s13, s13, {base}\n"
        return dma_group(pre, per, "WO")

    def xl(lo, hi, fl=""):
        return [x for ka in range(lo, hi) for x in xloads(ka, fl)]

    l0 = []
    for ci, (k0, n) in enumerate(WCH):
        l0 += wloads(ci) + xl(k0, k0 + n)
    NINIT = 38
    for x in l0[:NINIT]:
        issue(x)
    k("s_lshr_b32 s16, s7, 3")
    k("s_lshl_b32 s17, s6, 1")
    k("s_add_u32 s16, s16, s17")
    k("s_and_b32 s17, s7, 7")
    k("s_lshl_b32 s18, s16, 2")
    k("s_add_u32 s18, s18, s3")
    k("s_mul_i32 s19, s18, 18432")
    k("s_mul_i32 s61, s17, 92160")
    k(f"s_add_u32 s61, s61, {WS_WOF:#x}")
    srd(k, 28, 20, 0, NB_X)
    srd(k, 32, 56, 0, NB_X)
    srd(k, 36, 52, 0, NB_X)
    srd(k, 40, 54, 0, 1152)
    k(f"s_mov_b32 s44, {LOG2E:#x}")
    k(f"s_mov_b32 s45, {LOG2E:#x}")
    k("v_and_b32 v3, 15, v1")
    k("v_lshrrev_b32 v4, 4, v1")
    k("v_add_u32 v5, 0x10000, v2")
    k("v_add_u32 v12, 0x20000, v2")
    k("s_lshl_b32 s80, s3, 5")
    k("v_add_u32 v6, s80, v3")
    k(f"v_mul_u32_u24 v6, {TB_PITCH}, v6")
    k("v_mul_u32_u24 v7, 20, v4")
    k("v_add_u32 v7, v7, v6")
    k("v_add_u32 v7, 144, v7")
    k("v_lshrrev_b32 v8, 1, v4")
    k("v_mul_u32_u24 v8, 72, v8")
    k("v_add_u32 v6, v6, v8")
    k("v_bfe_u32 v8, v1, 2, 2")
    k("v_and_b32 v9, 1, v4")
    k("v_lshl_add_u32 v8, v9, 2, v8")
    k("v_lshlrev_b32 v8, 2, v8")
    k("v_and_b32 v9, 2, v4")
    k("v_add_u32 v8, v8, v9")
    k(f"v_mul_u32_u24 v8, {TB_PITCH}, v8")
    k("v_and_b32 v9, 3, v1")
    k("v_lshl_add_u32 v8, v9, 3, v8")
    k("s_lshr_b32 s80, s3, 1")
    k("s_and_b32 s81, s3, 1")
    k("s_mul_i32 s82, s80, 72")
    k("v_add_u32 v9, s82, v8")
    k("s_mul_i32 s82, s80, 40")
    k("s_lshl_b32 s83, s81, 5")
    k("s_add_u32 s82, s82, s83")
    k("s_add_u32 s82, s82, 144")
    k("v_add_u32 v8, s82, v8")
    k("s_mul_i32 s82, s80, 19")
    k("s_lshl_b32 s83, s81, 4")
    k("s_add_u32 s82, s82, s83")
    k("v_add_u32 v10, s82, v3")
    k("v_mul_u32_u24 v10, 80, v10")
    k("v_lshl_add_u32 v10, v4, 3, v10")
    k("s_cmp_eq_u32 s81, 0")
    k("s_cselect_b32 s83, 16, 3")
    k(f"v_mov_b32 v16, {L_DUMMY}")
    k("v_cmp_gt_u32 vcc, s83, v3")
    k("v_cndmask_b32 v10, v16, v10, vcc")
    k("v_cmp_gt_u32 vcc, 2, v4")
    k("v_cndmask_b32 v11, v16, v10, vcc")
    k("s_mul_i32 s46, s82, 80")
    k("s_mul_i32 s47, s83, 5")
    k("v_lshrrev_b32 v16, 2, v3")
    k("v_and_b32 v17, 3, v3")
    k("v_and_b32 v18, 1, v16")
    k("v_lshrrev_b32 v19, 1, v16")
    k("v_mul_u32_u24 v19, 19, v19")
    k("v_cmp_eq_u32 s[62:63], 1, v18")
    k("v_add_u32 v20, 9, v17")
    k("v_cmp_eq_u32 vcc, 0, v17")
    k("v_mov_b32 v21, 8")
    k("v_cndmask_b32 v20, v20, v21, vcc")
    k("v_cndmask_b32 v13, v17, v20, s[62:63]")
    k("v_add_u32 v20, 13, v17")
    k("v_add_u32 v21, 4, v17")
    k("v_cndmask_b32 v14, v21, v20, s[62:63]")
    k("v_add_u32 v20, 17, v17")
    k("v_mov_b32 v21, 9")
    k("v_cmp_eq_u32 vcc, 2, v17")
    k("v_cndmask_b32 v15, v20, v21, vcc")
    for a in (13, 14, 15):
        k(f"v_add_u32 v{a}, v{a}, v19")
        k(f"v_mul_u32_u24 v{a}, 80, v{a}")
        k(f"v_add_u32 v{a}, {L_KVS}, v{a}")
    k(f"v_mov_b32 v21, {L_ZERO}")
    k("v_cmp_eq_u32 vcc, 3, v17")
    k("v_cndmask_b32 v15, v15, v21, vcc")
    k("v_lshlrev_b32 v20, 1, v18")
    k("v_cmp_lt_u32 vcc, v17, v20")
    k("v_cndmask_b32 v15, v15, v21, vcc")
    k("v_and_b32 v20, 2, v16")
    k("v_cmp_ne_u32 vcc, v20, v4")
    for a in (13, 14, 15):
        k(f"v_cndmask_b32 v{a}, v{a}, v21, vcc")
    k("v_and_b32 v16, 1, v4")
    k("v_cmp_eq_u32 vcc, 0, v16")
    k("v_cndmask_b32 v240, 0, 1.0, vcc")
    k(f"v_mov_b32 v241, {BIG:#x}")
    k("v_cmp_gt_u32 vcc, 16, v1")
    k("v_lshlrev_b32 v17, 3, v3")
    k("v_cndmask_b32 v242, v241, v17, vcc")
    k("v_lshlrev_b32 v18, 7, v3")
    k("v_add_u32 v18, 124, v18")
    k("v_cndmask_b32 v249, v241, v18, vcc")
    k("v_lshrrev_b32 v18, 3, v3")
    k("v_mul_u32_u24 v18, 18432, v18")
    k("v_and_b32 v19, 7, v3")
    k("v_lshl_add_u32 v18, v19, 8, v18")
    k("v_add_u32 v18, 252, v18")
    k("v_cndmask_b32 v250, v241, v18, vcc")
    k("v_lshl_add_u32 v251, v4, 8, v17")
    k("v_lshlrev_b32 v16, 4, v3")
    k("s_lshl_b32 s80, s18, 4")
    k("v_add_u32 v243, s80, v3")
    k("v_mul_u32_u24 v243, 1152, v243")
    k("v_mad_u32_u24 v243, v4, 36, v243")
    k("s_mul_i32 s48, s17, 144")
    k("v_lshl_add_u32 v244, v4, 9, v16")
    k("v_lshl_add_u32 v245, v4, 2, v16")
    k("v_lshrrev_b32 v17, 2, v3")
    k("v_mul_u32_u24 v17, 18, v17")
    k("v_lshrrev_b32 v18, 1, v4")
    k("v_lshl_add_u32 v17, v18, 2, v17")
    k("v_and_b32 v18, 3, v3")
    k("v_add_u32 v17, v17, v18")
    k("v_lshlrev_b32 v17, 12, v17")
    k("v_and_b32 v18, 1, v4")
    k("v_lshl_add_u32 v246, v18, 4, v17")
    k("v_cmp_gt_u32 vcc, 2, v4")
    k("v_cndmask_b32 v247, v241, v246, vcc")
    k(f"s_mul_i32 s49, s17, {72*4096}")
    k("s_lshl_b32 s80, s18, 5")
    k("s_add_u32 s49, s49, s80")
    k(f"s_add_u32 s49, s49, {WS_YT:#x}")
    k("s_lshl_b32 s80, s3, 9")
    k("v_lshlrev_b32 v248, 5, v3")
    k("v_lshl_add_u32 v248, v4, 3, v248")
    k("v_add_u32 v248, s80, v248")
    k("s_lshl_b32 s50, s16, 14")
    k(f"s_add_u32 s50, s50, {WS_ST1:#x}")
    k("s_mul_i32 s80, s3, 768")
    k(f"v_mul_u32_u24 v252, {KVB}, v4")
    k("v_add_u32 v252, v252, v16")
    k("v_add_u32 v252, s80, v252")
    k("s_cmp_eq_u32 s3, 3")
    k("s_cselect_b32 s81, 14, 16")
    k("v_cmp_gt_u32 vcc, s81, v3")
    k("v_cndmask_b32 v253, v241, v252, vcc")
    k("s_mul_i32 s84, s7, 36")
    k("s_lshl_b32 s64, s6, 1")
    k("s_add_u32 s64, s64, s84")
    k("s_lshr_b32 s80, s3, 1")
    k("s_add_u32 s64, s64, s80")
    k("s_add_u32 s84, s84, 32")
    k("s_add_u32 s84, s84, s6")
    k(f"s_mov_b32 s65, {CONV_L[0]}")
    k("s_cmp_eq_u32 s80, 0")
    k(f"s_cselect_b32 s65, s65, {CONV_L[1]}")
    k("s_and_b32 s66, s3, 1")
    k("s_lshl_b32 s70, s7, 7")
    k("s_add_u32 s70, s70, s9")
    k("s_add_u32 s70, s70, 16384")
    k("s_lshl_b32 s71, s17, 11")
    k("s_add_u32 s71, s71, s19")
    k(f"s_add_u32 s71, s71, {WS_XF2:#x}")
    k("s_lshl_b32 s72, s17, 8")
    k("s_add_u32 s72, s72, s19")
    k(f"s_add_u32 s72, s72, {WS_XF2+16384:#x}")
    k("s_lshl_b32 s74, s7, 4")
    k("s_add_u32 s73, s74, s6")
    k(f"s_mul_i32 s73, s73, {KVB}")
    k(f"s_mul_i32 s74, s74, {KVB}")
    k(f"s_add_u32 s73, s73, {WS_KVP1:#x}")
    k(f"s_add_u32 s74, s74, {WS_KVP1:#x}")
    stamp(k, 1)

    CS = 200

    def conv_loads(quad):
        ch = "s84" if quad else "s64"
        nq = 1 if quad else 2
        part = "s_lshl_b32 s12, s3, 10\n" if quad else "s_lshl_b32 s12, s66, 11\n"
        out = []
        pre = f"s_lshl_b32 s67, {ch}, 12\n" + part + f"s_add_u32 s68, s67, s12\ns_add_u32 s69, s68, {WS_UT:#x}\n"
        for q in range(nq):
            out.append((pre + f"buffer_load_dwordx4 {vr(CS+4*q,4)}, v2, s[36:39], s68 offen offset:{1024*q}", "CV"))
            pre = ""
        pre = "v_subrev_u32 v236, 4, v2\ns_cmp_eq_u32 s12, 0\ns_cselect_b32 s12, 0, -1\nv_cmp_eq_u32 vcc, s12, v1\n" \
              "v_add_u32 v237, s68, v236\nv_cndmask_b32 v236, v237, v241, vcc\n"
        out.append((pre + f"buffer_load_dword v{CS+8}, v236, s[36:39], 0 offen", "CV"))
        if not quad:
            out.append((f"buffer_load_dword v{CS+9}, v237, s[36:39], 0 offen offset:1024", "CV"))
        for q in range(nq):
            out.append((f"buffer_load_dwordx4 {vr(CS+10+4*q,4)}, v2, {WS}, s69 offen offset:{1024*q+4}", "CV"))
        for q in range(nq):
            out.append((f"buffer_load_dwordx4 {vr(CS+18+4*q,4)}, v2, {WS}, s69 offen offset:{1024*q}", "CV"))
        out.append((f"s_lshl_b32 s12, {ch}, 1\nv_mov_b32 v238, 0\nbuffer_load_ushort v{CS+26}, v238, s[40:43], s12 offen", "CV"))
        return out

    def neg1(base):
        return "".join(f"v_mov_b32 v{base+i}, -1\n" for i in range(4))

    def fills_a():
        D = "v[228:231]"
        out = []
        pre = neg1(228) + "s_mul_i32 s12, s3, 768\nv_add_u32 v232, s12, v2\nv_cmp_gt_u32 vcc, 48, v1\nv_cndmask_b32 v232, v241, v232, vcc\n" \
            f"s_add_u32 s12, s73, {L_DELTA:#x}\n"
        out.append((pre + f"buffer_store_dwordx4 {D}, v232, {WS}, s12 offen sc1", "FA"))
        pre = f"s_lshl_b32 s12, s64, 12\ns_lshl_b32 s15, s66, 11\ns_add_u32 s12, s12, s15\ns_add_u32 s12, s12, {WS_YT:#x}\n"
        out.append((pre + f"buffer_store_dwordx4 {D}, v2, {WS}, s12 offen sc1", "FA"))
        out.append((f"buffer_store_dwordx4 {D}, v2, {WS}, s12 offen offset:1024 sc1", "FA"))
        pre = f"s_lshl_b32 s12, s84, 12\ns_lshl_b32 s15, s3, 10\ns_add_u32 s12, s12, s15\ns_add_u32 s12, s12, {WS_YT:#x}\n" \
              f"s_cmp_lt_u32 s6, 4\ns_cselect_b32 s12, s12, {BIG:#x}\n"
        out.append((pre + f"buffer_store_dwordx4 {D}, v2, {WS}, s12 offen sc1", "FA"))
        return out

    def fills_b(D0, T0):
        D = vr(D0, 4)
        out = []
        pre = neg1(D0) + f"v_and_b32 v{T0}, 31, v1\nv_lshlrev_b32 v{T0}, 4, v{T0}\nv_lshrrev_b32 v{T0+1}, 5, v1\nv_lshl_add_u32 v{T0}, v{T0+1}, 19, v{T0}\n" \
            "s_lshl_b32 s12, s17, 11\ns_add_u32 s12, s12, s50\ns_lshl_b32 s15, s3, 9\ns_add_u32 s12, s12, s15\n"
        out.append((pre + f"buffer_store_dwordx4 {D}, v{T0}, {WS}, s12 offen sc1", "FB"))
        out.append((f"buffer_store_dwordx4 {D}, v244, {WS}, s71 offen sc1", "FB"))
        out.append((f"buffer_store_dwordx4 {D}, v244, {WS}, s71 offen offset:256 sc1", "FB"))
        out.append((f"buffer_store_dword v{D0}, v245, {WS}, s72 offen sc1", "FB"))
        return out

    def fills_c(D0):
        D = vr(D0, 4)
        out = []
        pre = neg1(D0) + f"s_lshl_b32 s12, s7, 10\ns_add_u32 s12, s12, s9\ns_add_u32 s12, s12, {WS_OF2:#x}\n"
        out.append((pre + f"buffer_store_dwordx4 {D}, v2, {WS}, s12 offen sc1", "FC"))
        out.append((f"s_add_u32 s12, s12, 18432\nbuffer_store_dwordx4 {D}, v2, {WS}, s12 offen sc1", "FC"))
        out.append((f"s_add_u32 s12, s70, {WS_OF2:#x}\nbuffer_store_dwordx2 {vr(D0,2)}, v242, {WS}, s12 offen sc1", "FC"))
        out.append((f"s_add_u32 s12, s12, 18432\nbuffer_store_dwordx2 {vr(D0,2)}, v242, {WS}, s12 offen sc1", "FC"))
        return out

    def gemm_a(layer, sched):
        seq = [(ka, t) for ka in range(18) for t in range(7)]
        ready = {"c": -1}

        def rd(i):
            ka, t = seq[i]
            a, ci = w_lds(ka, t)
            if layer == 0 and ci > ready["c"]:
                ready["c"] = ci
                vwait(f"W{ci}")
                k("s_barrier")
                if ci == 0:
                    stamp(k, 2)
            b, off = lds_ref(a)
            k(f"ds_read_b128 {ar(AWB+4*(i%NWB),4)}, {b} offset:{off}")
        pre = NWB - 1
        for i in range(pre):
            rd(i)
        for i, (ka, t) in enumerate(seq):
            if t == 0:
                vwait(f"X{ka}")
            issued = min(i + pre, len(seq))
            k(f"s_waitcnt lgkmcnt({issued - i - 1})")
            for rtl in range(2):
                acc = vr(ACC + (rtl * 7 + t) * 4, 4)
                c = "0" if ka == 0 else acc
                k(f"v_mfma_f32_16x16x32_bf16 {acc}, {ar(AWB+4*(i%NWB),4)}, {vr(XB(ka,rtl),4)}, {c}")
            for x in sched.get(i, []):
                issue(x)
            if i in (27, 55, 83, 111, 125):
                stamp(k, 24 + (27, 55, 83, 111, 125).index(i))
            if i + pre < len(seq):
                rd(i + pre)

    sched = {}
    for n, x in enumerate(l0[NINIT:]):
        sched.setdefault(2 * n, []).append(x)
    x0l = [(f"buffer_load_dwordx4 a[0:3], v243, s[28:31], s48 offen", "X0"),
           (f"buffer_load_dwordx4 a[4:7], v243, s[28:31], s48 offen offset:16", "X0"),
           (f"buffer_load_dword a8, v243, s[28:31], s48 offen offset:32", "X0")]
    for n, x in enumerate(fills_a()):
        sched.setdefault(104 + 4 * n, []).append(x)
    gemm_a(0, sched)
    vm_l0 = list(k.vm)
    k("s_branch M_feat")

    k.label("M_gemm1")
    vreset()
    x1 = xl(0, 18, "sc1")
    for x in x1[:10]:
        issue(x)
    stamp(k, 1)
    sched = {}
    for n, x in enumerate(x1[10:]):
        sched.setdefault(3 * n, []).append(x)
    gemm_a(1, sched)
    k(f"v_add_f32 v16, v{ACC}, v{ACC+28}")
    k("v_cmp_u_f32 vcc, v16, v16")
    k("s_nop 1")
    k("s_cbranch_vccz M_gemm1_ok")
    k("s_add_u32 s75, s75, 1")
    k("s_cmp_lt_u32 s75, 4")
    k("s_cbranch_scc1 M_xretry")
    k.label("M_gemm1_ok")
    k("s_barrier")

    k.label("M_feat")
    k.vm = vm_l0
    st["done"] = 0
    k("s_nop 7")
    stamp(k, 3)
    cstamp(k, 30)
    wo_rest = conv_loads(False) + woloads(0)
    cnt = {"n": 0}

    def kv(text):
        k(text)
        cnt["n"] += 1
        if cnt["n"] % 15 == 0 and wo_rest:
            lab = "M_sk%d" % cnt["n"]
            k("s_cmp_eq_u32 s60, 0")
            k(f"s_cbranch_scc0 {lab}")
            issue(wo_rest.pop(0))
            k.label(lab)
    F, E, VP, M = 96, 136, 176, 16
    for i in range(4):
        k(f"v_mov_b32 v{30+i}, 0")
    k(f"v_mov_b32 v34, {L_ZERO}")
    k("v_lshl_add_u32 v34, v3, 4, v34")
    k("s_mov_b64 exec, 0x1f")
    k("ds_write_b128 v34, v[30:33]")
    k("s_mov_b64 exec, -1")
    for rtl in range(2):
        P = ACC + rtl * 28
        Fb = F + 20 * rtl
        for (op, d) in (("v_max3_f32", M), ("v_min3_f32", M + 2)):
            kv(f"{op} v{d}, v{P}, v{P+1}, v{P+2}")
            kv(f"{op} v{d+1}, v{P+3}, v{P+4}, v{P+5}")
            for n in range(6, 18, 4):
                kv(f"{op} v{d}, v{d}, v{P+n}, v{P+n+1}")
                kv(f"{op} v{d+1}, v{d+1}, v{P+n+2}, v{P+n+3}")
        kv(f"v_max_f32 v{M}, v{M}, v{M+1}")
        kv(f"v_min_f32 v{M+2}, v{M+2}, v{M+3}")
        kv(f"v_mul_f32 v{M}, {LOG2E ^ 0x80000000:#x}, v{M}")
        kv(f"v_mul_f32 v{M+2}, {LOG2E:#x}, v{M+2}")
        if rtl == 0: cstamp(k, 16)
        for n in range(0, 18, 2):
            kv(f"v_pk_fma_f32 {vr(E+n,2)}, {vr(P+n,2)}, s[44:45], {vr(M,2)} op_sel_hi:[1,0,0]")
        for n in range(0, 18, 2):
            kv(f"v_pk_fma_f32 {vr(E+18+n,2)}, {vr(P+n,2)}, s[44:45], {vr(M+2,2)} op_sel_hi:[1,0,0] neg_lo:[1,0,0] neg_hi:[1,0,0]")
        if rtl == 0: cstamp(k, 17)
        for n in range(36):
            kv(f"v_exp_f32 v{E+n}, v{E+n}")
        if rtl == 0: cstamp(k, 18)
        for half in range(2):
            b = E + 18 * half
            d = M + 4 + 4 * half
            kv(f"v_pk_add_f32 {vr(d,2)}, {vr(b,2)}, {vr(b+2,2)}")
            kv(f"v_pk_add_f32 {vr(d+2,2)}, {vr(b+4,2)}, {vr(b+6,2)}")
            kv(f"v_pk_add_f32 {vr(d,2)}, {vr(d,2)}, {vr(b+8,2)}")
            kv(f"v_pk_add_f32 {vr(d+2,2)}, {vr(d+2,2)}, {vr(b+10,2)}")
            kv(f"v_pk_add_f32 {vr(d,2)}, {vr(d,2)}, {vr(b+12,2)}")
            kv(f"v_pk_add_f32 {vr(d+2,2)}, {vr(d+2,2)}, {vr(b+14,2)}")
            kv(f"v_pk_add_f32 {vr(d,2)}, {vr(d,2)}, {vr(b+16,2)}")
            kv(f"v_pk_add_f32 {vr(d,2)}, {vr(d,2)}, {vr(d+2,2)}")
            kv(f"v_add_f32 v{d}, v{d}, v{d+1}")
            kv(f"v_rcp_f32 v{d}, v{d}")
            if rtl == 0 and half == 1: cstamp(k, 19)
        for half in range(2):
            b = E + 18 * half
            d = M + 4 + 4 * half
            for n in range(0, 18, 2):
                kv(f"v_pk_mul_f32 {vr(b+n,2)}, {vr(b+n,2)}, {vr(d,2)} op_sel_hi:[1,0]")
        if rtl == 0: cstamp(k, 20)
        for m in range(18):
            kv(f"v_cvt_pk_bf16_f32 v{Fb+m}, v{E+2*m}, v{E+2*m+1}")
        k(f"v_mov_b32 v{Fb+18}, 0")
        k(f"v_mov_b32 v{Fb+19}, 0")
        Vb = VP + 6 * rtl
        for m in range(4):
            kv(f"v_cvt_pk_bf16_f32 v{Vb+m}, v{P+18+2*m}, v{P+19+2*m}")
        kv(f"v_cvt_pk_bf16_f32 v{Vb+4}, v{P+26}, v240")
        ro = rtl * 16 * TB_PITCH
        if rtl == 0: cstamp(k, 21)
        k("s_mov_b32 exec_lo, 0xffff0000")
        k("s_mov_b32 exec_hi, 0xffff0000")
        for m in range(9):
            k(f"ds_write_b64 v6, {vr(Fb+2*m,2)} offset:{L_TB+ro+8*m}")
        k("s_mov_b64 exec, -1")
        for m in range(5):
            k(f"ds_write_b32 v7, v{Vb+m} offset:{L_TB+ro+4*m}")
        if rtl == 0: cstamp(k, 22)
    assert not wo_rest
    k("s_waitcnt lgkmcnt(0)")
    stamp(k, 4)
    cstamp(k, 23)
    k("s_barrier")
    TR = 136
    for ks in range(4):
        for rho in range(2):
            o = L_TB + (32 * ks + rho) * TB_PITCH
            k(f"ds_read_b64_tr_b16 {vr(TR+16*ks+2*rho,2)}, v8 offset:{o}")
            for ft in range(3):
                k(f"ds_read_b64_tr_b16 {vr(TR+16*ks+4+4*ft+2*rho,2)}, v9 offset:{o+32*ft}")
    k("v_add_u32 v16, s46, v2")
    k("v_cmp_gt_u32 vcc, s47, v1")
    k("v_cndmask_b32 v17, v241, v16, vcc")
    k("v_add_u32 v19, 64, v1")
    k("v_cmp_gt_u32 vcc, s47, v19")
    k("v_cndmask_b32 v18, v241, v16, vcc")
    k("s_add_u32 s13, s73, s59")
    k("v_and_b32 v19, 1, v3")
    k("v_lshlrev_b32 v19, 4, v19")
    k("v_mov_b32 v20, 0x3f80")
    k("v_lshlrev_b32 v20, v19, v20")
    k("v_lshrrev_b32 v19, 1, v3")
    for i in range(4):
        k(f"v_cmp_eq_u32 vcc, {i}, v19")
        k(f"v_cndmask_b32 v{88+i}, 0, v20, vcc")
    KD = 40
    for ks in range(4):
        k(f"s_waitcnt lgkmcnt({min(15, 8*(3-ks))})")
        for ft in range(3):
            c = "0" if ks == 0 else vr(KD + 4 * ft, 4)
            k(f"v_mfma_f32_16x16x32_bf16 {vr(KD+4*ft,4)}, {vr(TR+16*ks+4+4*ft,4)}, {vr(TR+16*ks,4)}, {c}")
    KP = 52
    k("v_cmp_eq_u32 vcc, 0, v4")
    for ft in range(3):
        k(f"v_cvt_pk_bf16_f32 v{KP+2*ft}, v{KD+4*ft}, v{KD+4*ft+1}")
        k(f"v_cvt_pk_bf16_f32 v{KP+2*ft+1}, v{KD+4*ft+2}, v{KD+4*ft+3}")
    k(f"v_cndmask_b32 v{KP+4}, 0, v{KP+4}, vcc")
    k(f"v_cndmask_b32 v{KP+5}, 0, v{KP+5}, vcc")
    k(f"ds_write_b64 v10, {vr(KP,2)}")
    k(f"ds_write_b64 v10, {vr(KP+2,2)} offset:32")
    k(f"ds_write_b64 v11, {vr(KP+4,2)} offset:64")
    k("s_waitcnt lgkmcnt(0)")
    k(f"ds_read_b128 v[20:23], v16 offset:{L_KVST}")
    k(f"ds_read_b128 v[24:27], v16 offset:{L_KVST+1024}")
    vwait("FA")
    k("s_waitcnt lgkmcnt(1)")
    issue((f"buffer_store_dwordx4 v[20:23], v17, {WS}, s13 offen sc1", "PUB"))
    k("s_waitcnt lgkmcnt(0)")
    issue((f"buffer_store_dwordx4 v[24:27], v18, {WS}, s13 offen offset:1024 sc1", "PUB"))
    stamp(k, 5)
    cstamp(k, 31)
    G = 136

    def gather_loads():
        out = []
        for q in range(4):
            pre = f"s_add_u32 s14, s74, s59\n" if q == 0 else f"s_add_u32 s14, s14, {4*KVB}\n"
            for c in range(3):
                out.append((pre + f"buffer_load_dwordx4 {vr(G+4*(3*q+c),4)}, v{253 if c == 2 else 252}, {WS}, s14 offen offset:{256*c} sc1", f"G{q}"))
                pre = ""
        return out
    k("s_cmp_eq_u32 s60, 0")
    k("s_cbranch_scc0 M_l1wo")

    CA = 40
    FBUF = [136, 16]

    def conv_addrs(clsreg, base):
        k(f"v_mul_u32_u24 v230, {H1_OFF-H0_OFF}, v227")
        k(f"v_sub_u32 v230, {H1_OFF+64-8}, v230")
        k("v_lshl_add_u32 v230, v228, 3, v230")
        k("v_sub_u32 v230, v230, v229")
        k(f"s_add_u32 s12, {clsreg}, {base}")
        k("v_add_u32 v230, s12, v230")
        k(f"v_mul_u32_u24 v231, {U1_OFF-U0_OFF}, v227")
        k(f"v_add_u32 v231, {U0_OFF+504-8}, v231")
        k("v_lshlrev_b32 v232, 6, v228")
        k("v_sub_u32 v231, v231, v232")
        k("v_sub_u32 v231, v231, v229")
        k("v_add_u32 v231, s12, v231")

    def conv_stage(nq, lastcond):
        for i in range(4):
            k(f"v_mov_b32 v{16+i}, 0")
        k("s_mov_b64 exec, 0xf")
        k(f"ds_write_b128 v234, v[16:19] offset:{H0_OFF}")
        k(f"ds_write_b128 v234, v[16:19] offset:{H1_OFF}")
        k("s_mov_b64 exec, 0xfffffff")
        k(f"ds_write_b128 v234, v[16:19] offset:{U0_OFF+4096}")
        k(f"ds_write_b128 v234, v[16:19] offset:{U1_OFF+4096}")
        k("s_mov_b64 exec, -1")
        vwait("CV")
        for q in range(nq):
            k(f"ds_write_b128 v233, {vr(CS+4*q,4)} offset:{H0_OFF+64+1024*q}")
            k(f"ds_write_b128 v233, {vr(CS+18+4*q,4)} offset:{U1_OFF+1024*q}")
        for q in range(nq):
            for j in range(4):
                prev = CS + 8 + q if j == 0 else CS + 4 * q + j - 1
                k(f"v_alignbit_b32 v{20+4*q+j}, v{CS+4*q+j}, v{prev}, 16")
            k(f"ds_write_b128 v233, {vr(20+4*q,4)} offset:{H1_OFF+64+1024*q}")
        k(lastcond)
        k("s_cselect_b32 s12, 63, -1")
        k("v_cmp_eq_u32 vcc, s12, v1")
        lr = CS + 10 + 4 * (nq - 1) + 3
        k(f"v_cndmask_b32 v{lr}, v{lr}, v16, vcc")
        for q in range(nq):
            k(f"ds_write_b128 v233, {vr(CS+10+4*q,4)} offset:{U0_OFF+1024*q}")
        k(f"v_lshlrev_b32 v235, 16, v{CS+26}")
        k("s_waitcnt lgkmcnt(0)")
        k("s_barrier")

    def reads(r, base):
        out = []
        for n in range(8):
            for rho in range(2):
                out.append(f"ds_read_b64 {vr(base+4*n+2*rho,2)}, v230 offset:{64*(8*n+r)+8*(1-rho)}")
            for rho in range(2):
                out.append(f"ds_read_b64 {vr(base+32+4*n+2*rho,2)}, v231 offset:{64*(56-(8*n-r))+8*(1-rho)}")
        return out

    def conv_mfma(ncls, bufs, extras, sbase=None):
        pairs = sorted([(a, b) for a in range(8) for b in range(8 - a)], key=lambda p: (max(p), p))
        for x in reads(0, bufs[0]):
            k(x)
        seen = set()
        for r in range(ncls):
            base = bufs[r & 1]
            nxt = reads(r + 1, bufs[(r + 1) & 1]) if r < ncls - 1 else []
            ex = list(extras.get(r, []))
            lvl = -1
            nissued = 0
            for idx, (a, b) in enumerate(pairs):
                if max(a, b) > lvl:
                    lvl = max(a, b)
                    k(f"s_waitcnt lgkmcnt({min(15, 4*(7-lvl) + nissued)})")
                jt = a + b
                c = ar(CA + 4 * jt, 4) if jt in seen else "0"
                seen.add(jt)
                k(f"v_mfma_f32_16x16x32_bf16 {ar(CA+4*jt,4)}, {vr(base+4*a,4)}, {vr(base+32+4*b,4)}, {c}")
                if idx < len(nxt):
                    k(nxt[idx])
                    nissued += 1
                if ex and idx % (2 if len(extras[r]) > 9 else 4) == 1:
                    issue(ex.pop(0))
            for x in ex:
                issue(x)
            if sbase is not None:
                stamp(k, sbase + r)

    def conv_finish(ntile, src, UU, T, P, Q):
        for i in range(ntile):
            a = src + 4 * i
            unpack(k, T + 1, T + 0, UU + 2 * i + 1)
            unpack(k, T + 3, T + 2, UU + 2 * i)
            for e in range(4):
                k(f"v_fmac_f32 v{a+e}, v235, v{T+e}")
        for i in range(2 * ntile):
            k(f"v_cvt_pk_bf16_f32 v{P+i}, v{src+2*i}, v{src+2*i+1}")
        k("v_cmp_eq_u32 vcc, 1, v227")
        for p in range(ntile // 2):
            A0, A1, B0, B1 = P + 4 * p, P + 4 * p + 1, P + 4 * p + 2, P + 4 * p + 3
            k(f"v_cndmask_b32 v{T}, v{B0}, v{A0}, vcc")
            k(f"v_cndmask_b32 v{T+1}, v{B1}, v{A1}, vcc")
            k(f"v_cndmask_b32 v{T+2}, v{A0}, v{B0}, vcc")
            k(f"v_cndmask_b32 v{T+3}, v{A1}, v{B1}, vcc")
            k(f"v_mov_b32_dpp v{T+4}, v{T} quad_perm:[1,0,3,2] row_mask:0xf bank_mask:0xf")
            k(f"v_mov_b32_dpp v{T+5}, v{T+1} quad_perm:[1,0,3,2] row_mask:0xf bank_mask:0xf")
            o = Q + 4 * p
            k(f"v_cndmask_b32 v{o}, v{T+2}, v{T+4}, vcc")
            k(f"v_cndmask_b32 v{o+1}, v{T+4}, v{T+2}, vcc")
            k(f"v_cndmask_b32 v{o+2}, v{T+3}, v{T+5}, vcc")
            k(f"v_cndmask_b32 v{o+3}, v{T+5}, v{T+3}, vcc")

    k("v_and_b32 v227, 1, v3")
    k("v_lshrrev_b32 v228, 1, v3")
    k("v_lshlrev_b32 v229, 4, v4")
    k("s_lshl_b32 s15, s66, 8")
    conv_addrs("s15", "s65")
    k("s_lshl_b32 s12, s66, 11")
    k("s_add_u32 s12, s12, s65")
    k("v_add_u32 v233, s12, v2")
    k("v_add_u32 v234, s65, v2")
    k("s_barrier")
    conv_stage(2, "s_cmp_eq_u32 s66, 1")
    stamp(k, 15)
    conv_mfma(4, FBUF, {0: woloads(1), 1: woloads(2) + x0l, 2: conv_loads(True) + fills_b(80, 84), 3: gather_loads()}, None)
    stamp(k, 6)
    k("s_barrier")
    k("s_cmp_eq_u32 s66, 0")
    k("s_cbranch_scc0 M_conv_x1")
    for i in range(4):
        k(f"ds_write_b128 v234, {ar(CA+16+4*i,4)} offset:{4096+1024*i}")
    for i in range(16):
        k(f"v_accvgpr_read_b32 v{16+i}, a{CA+i}")
    k("s_branch M_conv_x2")
    k.label("M_conv_x1")
    k("s_nop 7")
    for i in range(4):
        k(f"ds_write_b128 v234, {ar(CA+4*i,4)} offset:{1024*i}")
    for i in range(16):
        k(f"v_accvgpr_read_b32 v{16+i}, a{CA+16+i}")
    k.label("M_conv_x2")
    k("v_lshl_add_u32 v32, v227, 2, v229")
    k("v_lshl_add_u32 v32, v228, 6, v32")
    k(f"v_sub_u32 v33, {U1_OFF + 4092 - 8 - 512*3}, v32")
    k("s_lshl_b32 s12, s66, 11")
    k("s_sub_u32 s12, s65, s12")
    k("v_add_u32 v33, s12, v33")
    k("s_lshl_b32 s12, s66, 12")
    k("v_add_u32 v34, s12, v234")
    UU = 36
    for i in range(4):
        o = 512 * (3 - i)
        k(f"ds_read_b32 v{UU+2*i}, v33 offset:{o}")
        k(f"ds_read_b32 v{UU+2*i+1}, v33 offset:{o+8}")
    k("s_waitcnt lgkmcnt(0)")
    k("s_barrier")
    for i in range(4):
        k(f"ds_read_b128 {vr(48+4*i,4)}, v34 offset:{1024*i}")
    k("v_lshl_add_u32 v32, v227, 9, v229")
    k("v_lshl_add_u32 v32, v228, 6, v32")
    k("s_lshl_b32 s76, s64, 12")
    k("s_lshl_b32 s12, s66, 11")
    k("s_add_u32 s76, s76, s12")
    k(f"s_add_u32 s76, s76, {WS_YT:#x}")
    k("s_waitcnt lgkmcnt(0)")
    for i in range(8):
        k(f"v_pk_add_f32 {vr(16+2*i,2)}, {vr(16+2*i,2)}, {vr(48+2*i,2)}")
    conv_finish(4, 16, UU, 64, 72, 80)
    SUM = 40
    k("s_waitcnt vmcnt(0)")
    for q in range(4):
        for c in range(3):
            cc = "0" if q == 0 else vr(SUM + 4 * c, 4)
            k(f"v_mfma_f32_16x16x32_bf16 {vr(SUM+4*c,4)}, v[88:91], {vr(G+4*(3*q+c),4)}, {cc}")
    for p in range(2):
        k(f"buffer_store_dwordx4 {vr(80+4*p,4)}, v32, {WS}, s76 offen offset:{1024*p} sc1")
    stamp(k, 7)
    k("s_mov_b32 s75, 0")
    k("s_branch M_gchk")

    k.label("M_l1wo")
    for x in woloads(1) + woloads(2):
        k(x[0])
    k.label("M_spin1")
    vreset()
    for x in gather_loads():
        issue(x)
    for q in range(4):
        vwait(f"G{q}")
        for c in range(3):
            cc = "0" if q == 0 else vr(SUM + 4 * c, 4)
            k(f"v_mfma_f32_16x16x32_bf16 {vr(SUM+4*c,4)}, v[88:91], {vr(G+4*(3*q+c),4)}, {cc}")
    k.label("M_gchk")
    k("s_mul_i32 s14, s3, 768")
    k("v_lshlrev_b32 v16, 4, v3")
    k("v_lshl_add_u32 v16, v4, 3, v16")
    k(f"v_add_u32 v16, {L_KVS}, v16")
    k("v_add_u32 v16, s14, v16")
    k(f"v_mov_b32 v19, {L_DUMMY}")
    k("v_cmp_gt_u32 vcc, 2, v4")
    k("v_cndmask_b32 v16, v19, v16, vcc")
    k(f"v_add_f32 v17, v{SUM}, v{SUM+4}")
    k(f"v_cmp_u_f32 vcc, v17, v{SUM+8}")
    for c in range(3):
        k(f"v_cvt_pk_bf16_f32 v{20+2*c}, v{SUM+4*c}, v{SUM+4*c+1}")
        k(f"v_cvt_pk_bf16_f32 v{21+2*c}, v{SUM+4*c+2}, v{SUM+4*c+3}")
    k("s_cbranch_vccz M_got1")
    spin_tail("s75", "M_spin1", 2)
    k.label("M_got1")
    stamp(k, 8)
    for c in range(3):
        k(f"ds_write_b64 v16, {vr(20+2*c,2)} offset:{256*c}")
    k("s_waitcnt lgkmcnt(0)")
    k("s_barrier")
    AF = 136
    for p in range(5):
        for t in range(3):
            k(f"ds_read_b128 {vr(AF+4*(3*p+t),4)}, v{13+t} offset:{16*p}")
    k("s_lshl_b32 s12, s7, 10")
    k("s_add_u32 s12, s12, s9")
    k("s_add_u32 s12, s12, s59")
    k(f"s_add_u32 s12, s12, {WS_OF1:#x}")
    k("s_add_u32 s13, s70, s59")
    k(f"s_add_u32 s13, s13, {WS_OF1:#x}")
    O = 40
    for p in range(5):
        k(f"s_waitcnt lgkmcnt({3*(4-p)})")
        for t in (2, 0, 1):
            for rtl in range(2):
                acc = vr(O + 12 * rtl + 4 * t, 4)
                c = "0" if p == 0 else acc
                k(f"v_mfma_f32_16x16x32_bf16 {acc}, {vr(AF+4*(3*p+t),4)}, {vr(F+20*rtl+4*p,4)}, {c}")
    for rtl in range(2):
        o = O + 12 * rtl
        k(f"v_add_f32 v{o+10}, 0x358637bd, v{o+10}")
        k(f"v_rcp_f32 v{o+10}, v{o+10}")
    for rtl in range(2):
        o = O + 12 * rtl
        d = 20 + 8 * rtl
        for n in range(0, 10, 2):
            k(f"v_pk_mul_f32 {vr(o+n,2)}, {vr(o+n,2)}, {vr(o+10,2)} op_sel_hi:[1,0]")
        for m in range(5):
            k(f"v_cvt_pk_bf16_f32 v{d+m}, v{o+2*m}, v{o+2*m+1}")
        k(f"v_mov_b32 v{d+5}, v{d+4}")
        k(f"buffer_store_dwordx4 {vr(d,4)}, v2, {WS}, s12 offen sc1")
        k(f"v_permlane32_swap_b32 v{d+4}, v{d+5}")
        k(f"buffer_store_dwordx2 {vr(d+4,2)}, v242, {WS}, s13 offen sc1")
        if rtl == 0:
            k("s_add_u32 s12, s12, 18432")
            k("s_add_u32 s13, s13, 18432")
    stamp(k, 9)
    k("s_barrier")
    k("s_cmp_eq_u32 s60, 0")
    k("s_cbranch_scc0 M_b")
    k("s_cmp_lt_u32 s6, 4")
    k("s_cbranch_scc0 M_b")

    k.label("M_quad")
    vreset()
    k.vm.append("CV")
    st["done"] = 1
    k("s_lshl_b32 s15, s3, 7")
    conv_addrs("s15", CONV_L[0])
    k("s_lshl_b32 s12, s3, 10")
    k(f"s_add_u32 s12, s12, {CONV_L[0]}")
    k("v_add_u32 v233, s12, v2")
    k(f"v_add_u32 v234, {CONV_L[0]}, v2")
    conv_stage(1, "s_cmp_eq_u32 s3, 3")
    conv_mfma(2, FBUF, {}, None)
    k("s_lshl_b32 s12, s3, 13")
    k("v_add_u32 v34, s12, v2")
    for i in range(8):
        k(f"ds_write_b128 v34, {ar(CA+4*i,4)} offset:{1024*i}")
    k("v_lshl_add_u32 v32, v227, 2, v229")
    k("v_lshl_add_u32 v32, v228, 6, v32")
    k(f"v_sub_u32 v33, {CONV_L[0] + U1_OFF + 4092 - 8 - 512}, v32")
    k("s_lshl_b32 s12, s3, 10")
    k("v_subrev_u32 v33, s12, v33")
    k("s_lshl_b32 s12, s3, 11")
    k("v_add_u32 v34, s12, v2")
    for i in range(2):
        o = 512 * (1 - i)
        k(f"ds_read_b32 v{UU+2*i}, v33 offset:{o}")
        k(f"ds_read_b32 v{UU+2*i+1}, v33 offset:{o+8}")
    k("s_waitcnt lgkmcnt(0)")
    k("s_barrier")
    for sidx in range(4):
        for i in range(2):
            k(f"ds_read_b128 {vr(48+8*sidx+4*i,4)}, v34 offset:{8192*sidx+1024*i}")
    k("v_lshl_add_u32 v32, v227, 9, v229")
    k("v_lshl_add_u32 v32, v228, 6, v32")
    k("s_lshl_b32 s76, s84, 12")
    k("s_lshl_b32 s12, s3, 10")
    k("s_add_u32 s76, s76, s12")
    k(f"s_add_u32 s76, s76, {WS_YT:#x}")
    k("s_waitcnt lgkmcnt(0)")
    for i in range(4):
        k(f"v_pk_add_f32 {vr(48+2*i,2)}, {vr(48+2*i,2)}, {vr(56+2*i,2)}")
        k(f"v_pk_add_f32 {vr(64+2*i,2)}, {vr(64+2*i,2)}, {vr(72+2*i,2)}")
    for i in range(4):
        k(f"v_pk_add_f32 {vr(16+2*i,2)}, {vr(48+2*i,2)}, {vr(64+2*i,2)}")
    conv_finish(2, 16, UU, 64, 72, 80)
    k(f"buffer_store_dwordx4 v[80:83], v32, {WS}, s76 offen sc1")
    k("s_barrier")

    k.label("M_b")
    OB, BACC, YA, SEL = 96, 40, 168, 180
    k("v_and_b32 v20, 1, v3")
    k("v_lshlrev_b32 v20, 4, v20")
    k("v_mov_b32 v21, 0x3f80")
    k("v_lshlrev_b32 v21, v20, v21")
    k("v_lshrrev_b32 v20, 3, v3")
    k("v_sub_u32 v20, v4, v20")
    k("v_bfe_u32 v22, v3, 1, 2")
    k("v_lshl_add_u32 v20, v20, 1, v22")
    k("v_lshrrev_b32 v23, 3, v3")
    k("v_xor_b32 v23, v23, v4")
    k("v_and_b32 v23, 1, v23")
    k("v_cmp_eq_u32 vcc, 0, v23")
    k("v_cndmask_b32 v21, 0, v21, vcc")
    for i in range(8):
        k(f"v_cmp_eq_u32 vcc, {i}, v20")
        k(f"v_cndmask_b32 v{SEL+i}, 0, v21, vcc")
    k("s_add_u32 s77, s19, s59")
    k(f"s_add_u32 s77, s77, {WS_OF1:#x}")
    k("s_add_u32 s15, s77, 16384")
    k("s_mov_b32 s75, 0")
    k("s_mov_b32 s78, 0")
    k.label("M_spin2")
    k(f"buffer_load_dword v20, v249, {WS}, s15 offen sc1")
    k("s_waitcnt vmcnt(0)")
    k("v_cmp_eq_u32 vcc, -1, v20")
    k("s_nop 1")
    k("s_cbranch_vccz M_got2")
    spin_tail("s75", "M_spin2", 2)
    k.label("M_got2")
    vreset()
    stamp(k, 10)
    ol = []
    for ka in range(16):
        pre = "s_mov_b32 s12, s77\n" if ka == 0 else ("s_add_u32 s12, s12, 4096\n" if ka % 4 == 0 else "")
        ol.append((pre + f"buffer_load_dwordx4 {vr(OB+4*ka,4)}, v2, {WS}, s12 offen offset:{(ka%4)*1024} sc1", f"O{ka}"))
    for e in range(2):
        for h in range(2):
            ol.append((f"buffer_load_dwordx2 {vr(OB+64+4*e+2*h,2)}, v251, {WS}, s15 offen offset:{1024*e+128*h} sc1", f"O{16+e}"))
    yl = [(f"buffer_load_dwordx4 {vr(YA,4)}, v246, {WS}, s49 offen sc1", "Y"),
          (f"s_add_u32 s12, s49, 0x8000\nbuffer_load_dwordx4 {vr(YA+4,4)}, v246, {WS}, s12 offen sc1", "Y"),
          (f"s_add_u32 s12, s49, 0x10000\nbuffer_load_dwordx4 {vr(YA+8,4)}, v247, {WS}, s12 offen sc1", "Y")]
    allb = ol + yl
    for x in allb[:10]:
        issue(x)
    rest = allb[10:]
    seq = [(ka, t) for ka in range(18) for t in range(5)]

    def rdb(i):
        ka, t = seq[i]
        b, off = lds_ref(wo_lds(ka * 5 + t))
        k(f"ds_read_b128 {ar(AWB+4*(i%NWB),4)}, {b} offset:{off}")
    pre = NWB - 1
    for i in range(pre):
        rdb(i)
    for i, (ka, t) in enumerate(seq):
        if t == 0:
            vwait(f"O{ka}")
        issued = min(i + pre, len(seq))
        k(f"s_waitcnt lgkmcnt({issued - i - 1})")
        acc = vr(BACC + 4 * t, 4)
        c = "0" if ka == 0 else acc
        k(f"v_mfma_f32_16x16x32_bf16 {acc}, {ar(AWB+4*(i%NWB),4)}, {vr(OB+4*ka,4)}, {c}")
        if rest and i % 3 == 0:
            issue(rest.pop(0))
        if i + pre < len(seq):
            rdb(i + pre)
    assert not rest
    stamp(k, 29)
    XR, Y, Z, S = 60, 96, 116, 136
    k("s_cmp_eq_u32 s60, 0")
    k("s_cbranch_scc0 M_b_l1")
    for i in range(9):
        k(f"v_accvgpr_read_b32 v{16+i}, a{i}")
    for i in range(9):
        unpack(k, XR + 2 * i, XR + 2 * i + 1, 16 + i)
    k.label("M_yretry")
    k("s_waitcnt vmcnt(0)")
    for t in range(5):
        k(f"v_mfma_f32_16x16x32_bf16 {vr(Y+4*t,4)}, {vr(YA+4*(t//2),4)}, {vr(SEL+4*(t%2),4)}, 0")
    k(f"v_pk_add_f32 v[16:17], {vr(Y,2)}, {vr(Y+2,2)}")
    for i in range(2, 9):
        k(f"v_pk_add_f32 v[16:17], v[16:17], {vr(Y+2*i,2)}")
    k("v_cmp_u_f32 vcc, v16, v17")
    k("s_nop 1")
    k("s_cbranch_vccz M_b_go")
    k("s_add_u32 s78, s78, 1")
    k(f"s_cmp_lt_u32 s78, {SPIN_MAX}")
    k("s_cbranch_scc0 M_b_go")
    k("s_sleep 2")
    for x in yl:
        k(x[0])
    k("s_branch M_yretry")
    k.label("M_b_l1")
    k("s_waitcnt vmcnt(0)")
    for i in range(18):
        k(f"v_accvgpr_read_b32 v{XR+i}, a{i}")
        k(f"v_accvgpr_read_b32 v{Y+i}, a{20+i}")
    k.label("M_b_go")
    k("s_nop 7")
    k(f"v_cmp_u_f32 vcc, v{BACC}, v{BACC}")
    k("s_nop 1")
    k("s_cbranch_vccz M_b_ok")
    k("s_add_u32 s75, s75, 5000")
    k(f"s_cmp_lt_u32 s75, {SPIN_MAX}")
    k("s_cbranch_scc1 M_spin2")
    k.label("M_b_ok")
    stamp(k, 11)
    k("s_cmp_eq_u32 s60, 0")
    k("s_cbranch_scc0 M_nopf1")
    for x in (wloads(0) + wloads(4))[:9]:
        k(x[0])
    k.label("M_nopf1")
    for i in range(9):
        k(f"v_pk_add_f32 {vr(BACC+2*i,2)}, {vr(BACC+2*i,2)}, {vr(XR+2*i,2)}")
    for i in range(9):
        k(f"v_pk_mul_f32 {vr(Z+2*i,2)}, {vr(BACC+2*i,2)}, {vr(Y+2*i,2)}")
    X_, Y_, Z_ = BACC, Y, Z
    sums = [(X_, None), (X_, X_), (Z_, None), (X_, Z_), (Z_, Z_), (Z_, Y_), (Y_, None), (Y_, Y_)]
    for i in range(9):
        for n, (a, b) in enumerate(sums):
            d = vr(S + 2 * n, 2)
            if b is None:
                if i == 1:
                    k(f"v_pk_add_f32 {d}, {vr(a,2)}, {vr(a+2,2)}")
                elif i > 1:
                    k(f"v_pk_add_f32 {d}, {d}, {vr(a+2*i,2)}")
            else:
                if i == 0:
                    k(f"v_pk_mul_f32 {d}, {vr(a,2)}, {vr(b,2)}")
                else:
                    k(f"v_pk_fma_f32 {d}, {vr(a+2*i,2)}, {vr(b+2*i,2)}, {d}")
    for n in range(8):
        k(f"v_add_f32 v{S+2*n}, v{S+2*n}, v{S+2*n+1}")
    for n in range(4):
        red_swap(k, "v_permlane32_swap_b32", S + 2 * n, S + 2 * (n + 4), S + 2 * n + 1)
    red_swap(k, "v_permlane16_swap_b32", S + 1, S + 5, 18)
    red_swap(k, "v_permlane16_swap_b32", S + 3, S + 7, 19)
    k("s_lshl_b32 s13, s17, 11")
    k("s_add_u32 s13, s13, s50")
    k(f"buffer_store_dwordx2 v[18:19], v248, {WS}, s13 offen sc1")
    stamp(k, 12)
    k("s_barrier")
    k("s_cmp_eq_u32 s60, 0")
    k("s_cbranch_scc0 M_nopf2")
    k(f"s_add_u32 s13, s11, {WPOS[4]}")
    k(f"s_add_u32 s14, s11, {WCH[4][0]*7168}")
    k("s_add_u32 s14, s14, s10")
    for x in wloads(4)[2:] + fills_c(20) + wloads(1) + wloads(2):
        k(x[0])
    k.label("M_nopf2")
    k("s_mov_b32 s75, 0")
    G3, T = 152, 136
    k.label("M_spin3")
    k("s_mov_b32 s14, s50")
    for c in range(8):
        k(f"buffer_load_dwordx2 {vr(G3+2*c,2)}, v248, {WS}, s14 offen offset:{(c%2)*2048} sc1")
        if c % 2 == 1 and c < 7:
            k("s_add_u32 s14, s14, 4096")
    k("s_waitcnt vmcnt(0)")
    for c in range(4):
        k(f"v_pk_add_f32 {vr(G3+2*c,2)}, {vr(G3+2*c,2)}, {vr(G3+8+2*c,2)}")
    k(f"v_pk_add_f32 {vr(G3,2)}, {vr(G3,2)}, {vr(G3+2,2)}")
    k(f"v_pk_add_f32 {vr(G3+4,2)}, {vr(G3+4,2)}, {vr(G3+6,2)}")
    k(f"v_pk_add_f32 {vr(G3,2)}, {vr(G3,2)}, {vr(G3+4,2)}")
    k(f"v_cmp_u_f32 vcc, v{G3}, v{G3+1}")
    for h in range(2):
        k(f"v_mov_b32 v{T+h}, v{G3+h}")
        k(f"v_mov_b32 v{T+2+h}, v{G3+h}")
    k("s_cbranch_vccz M_got3")
    spin_tail("s75", "M_spin3", 1)
    k.label("M_got3")
    stamp(k, 13)
    for h in range(2):
        k(f"v_permlane16_swap_b32 v{T+h}, v{T+2+h}")
    for h in range(2):
        k(f"v_mov_b32 v{T+4+h}, v{T+h}")
        k(f"v_mov_b32 v{T+6+h}, v{T+2+h}")
    for h in range(2):
        k(f"v_permlane32_swap_b32 v{T+h}, v{T+4+h}")
        k(f"v_permlane32_swap_b32 v{T+2+h}, v{T+6+h}")
    INV = "0x3ae38e39"
    k(f"v_mul_f32 v16, {INV}, v{T}")
    k(f"v_mul_f32 v17, {INV}, v{T+1}")
    k("v_fma_f32 v17, -v16, v16, v17")
    k("v_max_f32 v17, 0, v17")
    k("v_add_f32 v17, 0x3727c5ac, v17")
    k("v_rsq_f32 v18, v17")
    k("v_mul_f32 v20, v18, v16")
    k("v_xor_b32 v20, 0x80000000, v20")
    for i in range(9):
        x = vr(BACC + 2 * i, 2)
        k(f"v_pk_fma_f32 {x}, {vr(Z+2*i,2)}, v[18:19], {x} op_sel_hi:[1,0,1]")
    for i in range(9):
        x = vr(BACC + 2 * i, 2)
        k(f"v_pk_fma_f32 {x}, {vr(Y+2*i,2)}, v[20:21], {x} op_sel_hi:[1,0,1]")
    k("s_cmp_eq_u32 s60, 0")
    k("s_cbranch_scc0 M_final")
    k(f"v_fma_f32 v22, v18, v{T+2}, v{T}")
    k(f"v_fma_f32 v22, v20, v{T+6}, v22")
    k(f"v_mul_f32 v24, v18, v{T+4}")
    k(f"v_fma_f32 v24, 2.0, v{T+3}, v24")
    k(f"v_mul_f32 v25, v20, v{T+5}")
    k("v_fma_f32 v24, 2.0, v25, v24")
    k(f"v_fma_f32 v23, v18, v24, v{T+1}")
    k(f"v_mul_f32 v25, v20, v{T+7}")
    k(f"v_fma_f32 v25, 2.0, v{T+2}, v25")
    k("v_fma_f32 v23, v20, v25, v23")
    k(f"v_mul_f32 v22, {INV}, v22")
    k(f"v_mul_f32 v23, {INV}, v23")
    k("v_fma_f32 v23, -v22, v22, v23")
    k("v_max_f32 v23, 0, v23")
    k("v_add_f32 v23, 0x3727c5ac, v23")
    k("v_rsq_f32 v24, v23")
    k("v_mul_f32 v26, v24, v22")
    k("v_xor_b32 v26, 0x80000000, v26")
    for i in range(9):
        k(f"v_pk_fma_f32 {vr(Z+2*i,2)}, {vr(BACC+2*i,2)}, v[24:25], v[26:27] op_sel_hi:[1,0,0]")
    for i in range(9):
        k(f"v_cvt_pk_bf16_f32 v{28+i}, v{Z+2*i}, v{Z+2*i+1}")
    k(f"buffer_store_dwordx4 v[28:31], v244, {WS}, s71 offen sc1")
    k(f"buffer_store_dwordx4 v[32:35], v244, {WS}, s71 offen offset:256 sc1")
    k(f"buffer_store_dword v36, v245, {WS}, s72 offen sc1")
    for x in wloads(3):
        k(x[0])
    for i in range(18):
        k(f"v_accvgpr_write_b32 a{i}, v{BACC+i}")
        k(f"v_accvgpr_write_b32 a{20+i}, v{Y+i}")
    stamp(k, 14)
    if DIAG:
        k("s_mov_b32 s96, 32")
    k("s_mov_b32 s60, 1")
    k(f"s_mov_b32 s59, {L_DELTA:#x}")
    k(f"s_add_u32 s58, s9, {WS_XF2:#x}")
    k(f"s_add_u32 s50, s50, {WS_ST2-WS_ST1:#x}")
    k("s_mov_b32 s75, 0")
    k("s_waitcnt vmcnt(0)")
    k("s_barrier")
    k.label("M_xretry")
    k("s_mov_b32 s78, 0")
    k("s_add_u32 s15, s58, 16384")
    k.label("M_spin4")
    k(f"buffer_load_dword v16, v250, {WS}, s15 offen sc1")
    k("s_waitcnt vmcnt(0)")
    k("v_cmp_eq_u32 vcc, -1, v16")
    k("s_nop 1")
    k("s_cbranch_vccz M_got4")
    spin_tail("s78", "M_spin4", 2)
    k.label("M_got4")
    stamp(k, 0)
    k("s_branch M_gemm1")

    k.label("M_final")
    for i in range(9):
        k(f"v_cvt_pk_bf16_f32 v{28+i}, v{BACC+2*i}, v{BACC+2*i+1}")
    k("buffer_store_dwordx4 v[28:31], v243, s[32:35], s48 offen")
    k("buffer_store_dwordx4 v[32:35], v243, s[32:35], s48 offen offset:16")
    k("buffer_store_dword v36, v243, s[32:35], s48 offen offset:32")
    if DIAG:
        k("s_waitcnt vmcnt(0)")
        stamp(k, 14)
        stamp_flush(k)
    k.label("M_end")
    k("s_endpgm")
    return k, 256, 163840


def main(out):
    ks = [gen_k0(), gen_main()]
    hdr = open("cdna_kernels/%s.s.ref" % NAME).read().split("\n")
    lines = [l for l in hdr if l.startswith(";") and "@launch" not in l and "Override" not in l and "grid=ceil" not in l]
    lines = lines[:14]
    for k, nwg, lds in ks:
        lines.append(f"; @launch kernel={k.name} grid=({nwg},1,1) block=(256,1,1) lds={lds}")
    lines.append('.amdgcn_target "amdgcn-amd-amdhsa--gfx950"')
    lines.append(".text")
    kds = []
    for k, nwg, lds in ks:
        code, kd, nv = k.text()
        print(k.name, "grid", nwg, "vgprs", nv, "sgprs", k.maxs, "lines", code.count("\n"), "lds", lds)
        lines.append(code)
        kds.append(kd)
    lines.append('.section .rodata,"a"')
    for kd in kds:
        lines.append(".p2align 6")
        lines.append(kd)
    open(out, "w").write("\n".join(lines))


if __name__ == "__main__":
    if len(sys.argv) > 2 and sys.argv[2] == "diag":
        DIAG = True
    main(sys.argv[1] if len(sys.argv) > 1 else "cdna_kernels/%s.s" % NAME)
```
